```python
import torch

def _softmax(x, axis=-1):
    return torch.softmax(x, dim=axis)
def _gelu(x):
    return torch.nn.functional.gelu(x, approximate="tanh")
def _silu(x):
    return torch.nn.functional.silu(x)
def _sigmoid(x):
    return torch.sigmoid(x)
def _layernorm(x, axis=-1, eps=1e-5):
    m = x.mean(dim=axis, keepdim=True)
    v = x.var(dim=axis, keepdim=True, unbiased=False)
    return (x - m) / torch.sqrt(v + eps)
def _scatter_add(tgt, idx, src, axis=0):
    return tgt.clone().index_add_(axis, idx, src)
def _segment_sum(src, seg, n):
    out = torch.zeros((n,) + src.shape[1:], dtype=src.dtype)
    return out.index_add_(0, seg, src)
def _pad(x, pw):
    flat = tuple(v for pair in reversed(pw) for v in pair)
    return torch.nn.functional.pad(x, flat)

kernel_name = 'standalone__mha_block_cached__near_ridge'

def setup_inputs():

    _w = (lambda a: (lambda t: t.to(torch.bfloat16) if t.is_floating_point() else t)(torch.as_tensor(a)))
    B, Sq, D = 8, 256, 640
    H, Sk, Dh = 32, 1024, 192
    return {
        "x": _w((lambda *s: torch.randn(*s, dtype=torch.bfloat16) * 0.8)(B, Sq, D)),
        "k_cache": _w((lambda *s: torch.randn(*s, dtype=torch.bfloat16) * 0.8)(B, H, Sk, Dh)),
        "v_cache": _w((lambda *s: torch.randn(*s, dtype=torch.bfloat16) * 0.05)(B, H, Sk, Dh)),
        "wq": _w((lambda *s: torch.randn(*s, dtype=torch.bfloat16) * 0.8)(D, H * Dh) * (D ** -0.5)),
        "wo": _w((lambda *s: torch.randn(*s, dtype=torch.bfloat16) * 0.05)(H * Dh, D) * ((H * Dh) ** -0.5)),
    }

def reference(x, k_cache, v_cache, wq, wo):
    B, Sq, D = x.shape
    H, Dh = 32, 192
    q = (lambda x, *d: x.permute(*d))((x @ wq).reshape(B, Sq, H, Dh), 0, 2, 1, 3)
    scores = torch.einsum("bhqd,bhkd->bhqk", q, k_cache) * (Dh ** -0.5)
    p = _softmax(scores, axis=-1)
    o = torch.einsum("bhqk,bhkd->bhqd", p, v_cache)
    return (lambda x, *d: x.permute(*d))(o, 0, 2, 1, 3).reshape(B, Sq, H * Dh) @ wo
```

```python
import sys, math
OUT = sys.argv[1] if len(sys.argv) > 1 else "standalone__mha_block_cached__near_ridge.s"
OPT = dict(a.split("=") for a in sys.argv[2:])
L = []
def e(s): L.append("  " + s)
def lab(s): L.append(s + ":")
def vr(a, n): return f"v[{a}:{a+n-1}]"
def ar(a, n): return f"a[{a}:{a+n-1}]"

TILE = 12288
NK = 6; NV = 6
KBASE = 0; VBASE = NK * TILE
LDS_A = (NK + NV) * TILE
WS_O = 0; WS_WO = 25165824; WS_BYTES = 402653184
CSCALE = (192 ** -0.5) * math.log2(math.e)
import struct
def f32(x): return "0x%08x" % struct.unpack("<I", struct.pack("<f", x))[0]
THR = 65536.0
NT_KV = OPT.get("nt", "0") == "1"

sX, sK, sV, sW, sWS = 8, 12, 16, 20, 24
s_wave, s_b, s_h = 28, 29, 30
s_kd, s_vd = 31, 32
s_km, s_vm = 33, 34
s_krd, s_vrd = 35, 36
s_cnt, s_thr, s_tmp, s_tmp2 = 37, 38, 39, 44
s_c = 40
s_xo = 42
s_w3 = 43
s_kend, s_vend = 45, 46
v_lane = 0
v_kd = 1
v_vd = 4
v_wd = 7
v_kb = 10
v_vb = 14
v_ka = [16, 22]
v_xo = 28
v_ps = 30
FR = 32
NF = 6
TMP = 56
S = [64, 96]
P = [128, 144]
NEGM = 160
QV = 192
v_l = 224
v_p = 226
v_t = 228
v_oo = 240
def qfrag(t, qt):
    if t < 4: return vr(QV + 4 * (2 * t + qt), 4)
    if t < 8: return ar(224 + 4 * (2 * (t - 4) + qt), 4)
    return ar(192 + 4 * (2 * (t - 8) + qt), 4)
def oacc(dt, qt): return 16 * (2 * dt + qt)
def qacc(dt, qt): return 64 + 16 * (2 * dt + qt)

def srd(d, lo, hi, nrec):
    e(f"s_mov_b32 s{d}, s{lo}"); e(f"s_and_b32 s{d+1}, s{hi}, 0xffff")
    e(f"s_mov_b32 s{d+2}, {nrec}"); e(f"s_mov_b32 s{d+3}, 0x20000")

class LG:
    def __init__(s): s.n = 0; s.tag = {}
    def issue(s, tag=None):
        s.n += 1
        if tag is not None: s.tag[tag] = s.n
    def wait(s, tag):
        k = s.n - s.tag[tag]
        e(f"s_waitcnt lgkmcnt({min(k,15)})")

def kread(fr, t, par):
    return [f"ds_read_b128 {vr(FR+4*fr,4)}, v{v_ka[par]+(t%4)} offset:{128*(t//4)}"]
def vread(fr, dt, s, par):
    a = v_ka[par] + 4 + (dt & 1)
    o = 128 * (dt >> 1) + 384 * 16 * s
    return [f"ds_read_b64_tr_b16 {vr(FR+4*fr,2)}, v{a} offset:{o}",
            f"ds_read_b64_tr_b16 {vr(FR+4*fr+2,2)}, v{a} offset:{o+384*4}"]

def ring_adv(s, n_slots, base):
    return [f"s_add_u32 s{s}, s{s}, {TILE}", f"s_cmp_ge_u32 s{s}, s{n_slots}", f"s_cselect_b32 s{s}, s{base}, s{s}"]

def dma_k():
    nt = " nt" if NT_KV else ""
    r = [[f"s_mov_b32 m0, s{s_km}", "s_nop 0", f"buffer_load_dwordx4 v{v_kd}, s[{sK}:{sK+3}], s{s_kd} offen{nt} lds"]]
    for i in (1, 2): r.append([f"buffer_load_dwordx4 v{v_kd+i}, s[{sK}:{sK+3}], s{s_kd} offen offset:{1024*i}{nt} lds"])
    return r
def dma_v(isw):
    nt = " nt" if (NT_KV and not isw) else ""
    srd_, vo = (sW, v_wd) if isw else (sV, v_vd)
    r = [[f"s_mov_b32 m0, s{s_vm}", "s_nop 0", f"buffer_load_dwordx4 v{vo}, s[{srd_}:{srd_+3}], s{s_vd} offen{nt} lds"]]
    for i in (1, 2): r.append([f"buffer_load_dwordx4 v{vo+i}, s[{srd_}:{srd_+3}], s{s_vd} offen offset:{1024*i}{nt} lds"])
    return r
def adv_km(): return [f"s_add_u32 s{s_kd}, s{s_kd}, {TILE}", f"s_add_u32 s{s_km}, s{s_km}, {TILE}",
                      f"s_cmp_ge_u32 s{s_km}, s{s_kend}", f"s_cselect_b32 s{s_tmp}, {NK*TILE}, 0", f"s_sub_u32 s{s_km}, s{s_km}, s{s_tmp}"]
def adv_vm(step): return [f"s_add_u32 s{s_vd}, s{s_vd}, {step}", f"s_add_u32 s{s_vm}, s{s_vm}, {TILE}",
                      f"s_cmp_ge_u32 s{s_vm}, s{s_vend}", f"s_cselect_b32 s{s_tmp}, {NV*TILE}, 0", f"s_sub_u32 s{s_vm}, s{s_vm}, s{s_tmp}"]
def adv_krd(par):
    r = [f"s_add_u32 s{s_krd}, s{s_krd}, {TILE}", f"s_cmp_ge_u32 s{s_krd}, {KBASE+NK*TILE}",
         f"s_cselect_b32 s{s_krd}, {KBASE}, s{s_krd}"]
    r += [f"v_add_u32 v{v_ka[par]+i}, s{s_krd}, v{v_kb+i}" for i in range(4)]
    return r
def adv_vrd(par):
    r = [f"s_add_u32 s{s_vrd}, s{s_vrd}, {TILE}", f"s_cmp_ge_u32 s{s_vrd}, {VBASE+NV*TILE}",
         f"s_cselect_b32 s{s_vrd}, {VBASE}, s{s_vrd}"]
    r += [f"v_add_u32 v{v_ka[par]+4+i}, s{s_vrd}, v{v_vb+i}" for i in range(2)]
    return r

def sm_ops(Sc, Pc):
    ops = []; pend = None; first = [True, True]
    idx = 0
    for qt in range(2):
        for pr in range(8):
            ta = TMP + 2 * (idx % 4); tb = ta + 1; idx += 1
            r = Sc + 16 * qt + 2 * pr
            ops.append((2, f"v_exp_f32 v{ta}, v{r}")); ops.append((2, f"v_exp_f32 v{tb}, v{r+1}"))
            if pend: ops += pend
            if first[qt]:
                pend = [(1, f"v_add_f32 v{v_p+qt}, v{ta}, v{tb}")]; first[qt] = False
            else:
                pend = [(1, f"v_add_f32 v{v_p+qt}, v{v_p+qt}, v{ta}"), (1, f"v_add_f32 v{v_p+qt}, v{v_p+qt}, v{tb}")]
            pend.append((1, f"v_cvt_pk_bf16_f32 v{Pc+8*qt+pr}, v{ta}, v{tb}"))
    ops.append((1, "s_nop 0")); ops += pend
    return ops

def halfmax(src16, dst, tmp):
    e(f"v_max3_f32 v{dst}, v{src16}, v{src16+1}, v{src16+2}")
    for i in range(3, 15, 2): e(f"v_max3_f32 v{dst}, v{dst}, v{src16+i}, v{src16+i+1}")
    e(f"v_max_f32 v{dst}, v{dst}, v{src16+15}")
    e(f"v_mov_b32 v{tmp}, v{dst}"); e("s_nop 1")
    e(f"v_permlane32_swap_b32 v{dst}, v{tmp}"); e("s_nop 1")
    e(f"v_max_f32 v{dst}, v{dst}, v{tmp}")

PD = 3
def iteration(par, do_qk, do_sm, do_pv, nxt, first_c_negm=True, chk=None, dma=True, vm_wait=18, lg=None):
    Sc, Sn, Pc, Pp = S[par], S[1-par], P[par], P[1-par]
    def pairs(dq, dp):
        ks = [("K", t) for t in range(12)] if dq else []
        vs = [("V", (s, dt)) for s in range(2) for dt in range(6)] if dp else []
        if dq and dp:
            o = [ks[0]]
            for i in range(1, 12): o += [ks[i], vs[i-1]]
            o += [vs[11]]
            return o
        return ks + vs
    pl = pairs(do_qk, do_pv)
    npl = pairs(*nxt)
    n = len(pl)
    def rd(item, fr, pr_):
        return kread(fr, item[1], pr_) if item[0] == "K" else vread(fr, item[1][1], item[1][0], pr_)
    q = sm_ops(Sc, Pc) if do_sm else []
    tot = sum(c for c, _ in q)
    nslots = 2 * n
    misc = {}
    def put(slot, grp): misc.setdefault(slot, []).append(grp)
    bslot = 3
    put(bslot, [f"s_waitcnt vmcnt({vm_wait})", "s_barrier"])
    if dma:
        d = dma_k() + [adv_km()] + dma_v(False) + [adv_vm(TILE)]
        step = max(1, (nslots - bslot - 8) // len(d))
        for i, g in enumerate(d): put(min(bslot + 1 + i * step, nslots - 1), g)
    aslot = max(bslot + 1, nslots - 2 * PD - 4)
    if nxt[0]: put(aslot - 2 if aslot - 2 > 0 else 0, adv_krd(1 - par))
    if nxt[1]: put(aslot, adv_vrd(1 - par))
    done = 0; qi = 0
    for p in range(n):
        item = pl[p]; fr = p % NF
        for half in range(2):
            slot = 2 * p + half
            if half == 0: lg.wait((par, p))
            qt = half
            if item[0] == "K":
                t = item[1]
                c = (vr(NEGM + 16 * qt, 16) if first_c_negm else "0") if t == 0 else vr(Sn + 16 * qt, 16)
                e(f"v_mfma_f32_32x32x16_bf16 {vr(Sn+16*qt,16)}, {vr(FR+4*fr,4)}, {qfrag(t,qt)}, {c}")
            else:
                s, dt = item[1]
                o = ar(oacc(dt, qt), 16)
                e(f"v_mfma_f32_32x32x16_bf16 {o}, {vr(FR+4*fr,4)}, {vr(Pp+8*qt+4*s,4)}, {o}")
            if half == 0:
                pp = p + PD
                if pp < n: rr, tg = rd(pl[pp], pp % NF, par), (par, pp)
                elif pp - n < len(npl) and npl: rr, tg = rd(npl[pp - n], (pp - n) % NF, 1 - par), (1 - par, pp - n)
                else: rr = []
                for r in rr: e(r); lg.issue(tg)
            for g in misc.get(slot, []):
                for r in g: e(r)
            lim = tot * (slot + 1) / max(1, nslots - 3)
            while qi < len(q) and done < lim:
                e(q[qi][1]); done += q[qi][0]; qi += 1
    while qi < len(q): e(q[qi][1]); qi += 1
    assert n % NF == 0
    if do_sm:
        if chk:
            e(f"v_max_f32 v{v_t}, v{v_p}, v{v_p+1}")
            e(f"v_cmp_lt_f32 vcc, s{s_thr}, v{v_t}")
            e(f"s_cbranch_vccnz {chk}")
            lab(chk + "_ret")
        e(f"v_add_f32 v{v_l}, v{v_l}, v{v_p}"); e(f"v_add_f32 v{v_l+1}, v{v_l+1}, v{v_p+1}")

def rare(name, par, has_next):
    Sc, Sn, Pc = S[par], S[1-par], P[par]
    lab(name)
    e("s_nop 15"); e("s_nop 15")
    for qt in range(2):
        d = v_t + 1; tmp = v_t + 2; al = v_t + 3
        halfmax(Sc + 16 * qt, d, tmp)
        e(f"v_max_f32 v{d}, 0, v{d}")
        e(f"v_sub_f32 v{al}, 0, v{d}"); e(f"v_exp_f32 v{al}, v{al}"); e("s_nop 1")
        for i in range(16):
            e(f"v_sub_f32 v{Sc+16*qt+i}, v{Sc+16*qt+i}, v{d}")
            if has_next: e(f"v_sub_f32 v{Sn+16*qt+i}, v{Sn+16*qt+i}, v{d}")
            e(f"v_sub_f32 v{NEGM+16*qt+i}, v{NEGM+16*qt+i}, v{d}")
        e(f"v_mul_f32 v{v_l+qt}, v{v_l+qt}, v{al}")
        for dt in range(6):
            for i in range(16):
                a = oacc(dt, qt) + i
                e(f"v_accvgpr_read_b32 v{tmp}, a{a}"); e(f"v_mul_f32 v{tmp}, v{tmp}, v{al}"); e(f"v_accvgpr_write_b32 a{a}, v{tmp}")
    for _, t in sm_ops(Sc, Pc): e(t)
    e("s_nop 7")
    e(f"s_branch {name}_ret")

def kernel_a():
    K = "attn_kernel"
    L.append(f".globl {K}\n.p2align 8\n.type {K},@function"); lab(K)
    e("s_cmp_ge_u32 s2, 256"); e("s_cbranch_scc1 A_END")
    e("s_load_dwordx8 s[48:55], s[0:1], 0")
    e("s_load_dwordx2 s[56:57], s[0:1], 56")
    e(f"v_lshrrev_b32 v1, 6, v0"); e(f"v_and_b32 v{v_lane}, 63, v0"); e("s_nop 0")
    e(f"v_readfirstlane_b32 s{s_wave}, v1")
    e(f"s_lshr_b32 s{s_b}, s2, 5"); e(f"s_and_b32 s{s_h}, s2, 31")
    e("s_waitcnt lgkmcnt(0)")
    e(f"s_mul_i32 s{s_tmp}, s{s_b}, 327680"); e(f"s_add_u32 s48, s48, s{s_tmp}"); e("s_addc_u32 s49, s49, 0")
    e(f"s_mul_i32 s{s_tmp}, s2, 393216")
    e(f"s_add_u32 s50, s50, s{s_tmp}"); e("s_addc_u32 s51, s51, 0"); e(f"s_add_u32 s52, s52, s{s_tmp}"); e("s_addc_u32 s53, s53, 0")
    e(f"s_mul_i32 s{s_tmp}, s{s_h}, 384"); e(f"s_add_u32 s54, s54, s{s_tmp}"); e("s_addc_u32 s55, s55, 0")
    srd(sX, 48, 49, 327680); srd(sK, 50, 51, 393216); srd(sV, 52, 53, 393216)
    srd(sW, 54, 55, 0); e(f"s_sub_u32 s{sW+2}, 7864320, s{s_tmp}")
    srd(sWS, 56, 57, WS_BYTES)
    e(f"s_mov_b32 s{s_c}, {f32(CSCALE)}"); e(f"s_mov_b32 s{s_c+1}, {f32(CSCALE)}"); e(f"s_mov_b32 s{s_thr}, {f32(THR)}")
    e(f"s_mul_i32 s{s_w3}, s{s_wave}, 3072")
    T0, T1, T2, T3 = 228, 229, 230, 231
    e(f"s_mov_b32 s{s_tmp2}, 0xaaab")
    for i in range(3):
        e(f"s_mul_i32 s{s_tmp}, s{s_wave}, 192"); e(f"s_add_u32 s{s_tmp}, s{s_tmp}, {64*i}")
        e(f"v_add_u32 v{T0}, s{s_tmp}, v{v_lane}")
        e(f"v_mul_lo_u32 v{T1}, v{T0}, s{s_tmp2}"); e(f"v_lshrrev_b32 v{T1}, 20, v{T1}")
        e(f"v_mul_u32_u24 v{T2}, 24, v{T1}"); e(f"v_sub_u32 v{T2}, v{T0}, v{T2}")
        e(f"v_bfe_u32 v{T3}, v{T1}, 1, 3"); e(f"v_xor_b32 v{T3}, v{T2}, v{T3}"); e(f"v_lshlrev_b32 v{T3}, 4, v{T3}")
        e(f"v_mul_u32_u24 v{v_kd+i}, 384, v{T1}"); e(f"v_add_u32 v{v_kd+i}, v{v_kd+i}, v{T3}")
        e(f"v_bfe_u32 v{T3}, v{T1}, 1, 1"); e(f"v_lshlrev_b32 v{T3}, 2, v{T3}"); e(f"v_xor_b32 v{T3}, v{T2}, v{T3}"); e(f"v_lshlrev_b32 v{T3}, 4, v{T3}")
        e(f"v_mul_u32_u24 v{v_vd+i}, 384, v{T1}"); e(f"v_add_u32 v{v_vd+i}, v{v_vd+i}, v{T3}")
        e(f"v_mul_u32_u24 v{v_wd+i}, 12288, v{T1}"); e(f"v_add_u32 v{v_wd+i}, v{v_wd+i}, v{T3}")
        if i:
            for b in (v_kd, v_vd, v_wd): e(f"v_subrev_u32 v{b+i}, {1024*i}, v{b+i}")
    e(f"v_and_b32 v{T0}, 31, v{v_lane}")
    e(f"v_and_b32 v{T1}, 19, v{T0}")
    e(f"v_bfe_u32 v{T2}, v{T0}, 2, 1"); e(f"v_lshlrev_b32 v{T2}, 3, v{T2}"); e(f"v_or_b32 v{T1}, v{T1}, v{T2}")
    e(f"v_bfe_u32 v{T2}, v{T0}, 3, 1"); e(f"v_lshlrev_b32 v{T2}, 2, v{T2}"); e(f"v_or_b32 v{T1}, v{T1}, v{T2}")
    e(f"v_bfe_u32 v{T2}, v{T1}, 1, 3")
    e(f"v_lshrrev_b32 v{T3}, 5, v{v_lane}")
    e(f"v_xor_b32 v{T2}, v{T2}, v{T3}")
    e(f"v_mul_u32_u24 v{T1}, 384, v{T1}")
    for tt in range(4):
        e(f"v_xor_b32 v{T0}, {2*tt}, v{T2}"); e(f"v_lshlrev_b32 v{T0}, 4, v{T0}"); e(f"v_add_u32 v{v_kb+tt}, v{T1}, v{T0}")
    e(f"v_bfe_u32 v{T0}, v{v_lane}, 2, 2")
    e(f"v_lshl_add_u32 v{T1}, v{T3}, 3, v{T0}")
    e(f"v_mul_u32_u24 v{T1}, 384, v{T1}")
    e(f"v_bfe_u32 v{T2}, v{v_lane}, 4, 1"); e(f"v_lshl_add_u32 v{T1}, v{T2}, 5, v{T1}")
    e(f"v_and_b32 v{T2}, 1, v{v_lane}"); e(f"v_lshl_add_u32 v{T1}, v{T2}, 4, v{T1}")
    e(f"v_bfe_u32 v{T2}, v{v_lane}, 1, 1"); e(f"v_lshl_add_u32 v{T1}, v{T2}, 3, v{T1}")
    e(f"v_bfe_u32 v{T2}, v{v_lane}, 3, 1")
    e(f"v_lshl_add_u32 v{v_vb}, v{T2}, 6, v{T1}")
    e(f"v_xor_b32 v{T2}, 1, v{T2}"); e(f"v_lshl_add_u32 v{v_vb+1}, v{T2}, 6, v{T1}")
    e(f"v_and_b32 v{T0}, 31, v{v_lane}"); e(f"s_lshl_b32 s{s_tmp}, s{s_wave}, 6"); e(f"v_add_u32 v{T0}, s{s_tmp}, v{T0}")
    e(f"v_mul_u32_u24 v{T0}, 1280, v{T0}"); e(f"v_lshl_add_u32 v{v_xo}, v{T3}, 4, v{T0}"); e(f"v_add_u32 v{v_xo+1}, {32*1280}, v{v_xo}")
    e(f"s_mov_b32 s{s_kd}, 0"); e(f"s_mov_b32 s{s_vd}, 0")
    e(f"s_add_u32 s{s_km}, s{s_w3}, {KBASE}"); e(f"s_add_u32 s{s_vm}, s{s_w3}, {VBASE}")
    e(f"s_add_u32 s{s_kend}, s{s_km}, {NK*TILE}"); e(f"s_add_u32 s{s_vend}, s{s_vm}, {NV*TILE}")
    WSTEP = 32 * 12288
    def xload(i):
        base = 192 + 16 * (i % 4)
        return [f"buffer_load_dwordx4 {ar(base+4*(2*s+qt),4)}, v{v_xo+qt}, s[{sX}:{sX+3}], 0 offen offset:{64*i+32*s}" for s in range(2) for qt in range(2)]
    for i in range(NV - 1):
        for g in dma_v(True) + [adv_vm(WSTEP)]:
            for r in g: e(r)
        if i < 3:
            for r in xload(i): e(r)
    for i in range(NK):
        for g in dma_k() + [adv_km()]:
            for r in g: e(r)
    vm = []
    for i in range(NV - 1):
        vm += [("W", i)] * 3
        if i < 3: vm += [("x", i)] * 4
    vm += [("K", i) for i in range(NK) for _ in range(3)]
    def vmwait(tags):
        last = max(k for k, t in enumerate(vm) if t in tags)
        return min(63, len(vm) - 1 - last)
    lg = LG()
    e(f"s_mov_b32 s{s_vrd}, {VBASE + (NV-1)*TILE}")
    for r in adv_vrd(0): e(r)
    e(f"s_waitcnt vmcnt({vmwait([('W',0),('x',0)])})"); e("s_barrier")
    qp = [(s, dt) for s in range(2) for dt in range(6)]
    for p in range(PD):
        for r in vread(p % NF, qp[p][1], qp[p][0], 0): e(r); lg.issue((0, p))
    zero_q = [f"v_accvgpr_write_b32 a{i}, 0" for i in range(192)]
    for i in range(20):
        par = i & 1
        misc = {}
        def put(slot, grp): misc.setdefault(slot, []).append(grp)
        if i < 19:
            put(3, [f"s_waitcnt vmcnt({vmwait([('W',i+1),('x',i+1)])})", "s_barrier"])
        else:
            put(3, [f"s_waitcnt vmcnt({vmwait([('K',0),('K',1)])})", "s_barrier"])
        st = i + NV - 1
        isw = st < 20
        d = dma_v(isw) + [adv_vm(WSTEP if st < 19 else TILE)]
        if st == 19: d[-1] = adv_vm(0) + [f"s_mov_b32 s{s_vd}, 0"]
        for k, g in enumerate(d): put(5 + 3 * k, g)
        vm += [("W", st)] * 3
        if i + 3 < 20:
            put(4, xload(i + 3));
            vm[-3:-3] = [("x", i + 3)] * 4
        if i < 19: put(14, adv_vrd(1 - par))
        else: put(14, [f"s_mov_b32 s{s_krd}, {KBASE+(NK-1)*TILE}"] + adv_krd(0))
        for p in range(12):
            s, dt = qp[p]; fr = p % NF
            for qt in range(2):
                slot = 2 * p + qt
                if qt == 0: lg.wait((par, p))
                acc = vr(qacc(dt, qt), 16)
                c = "0" if (i == 0 and s == 0) else acc
                e(f"v_mfma_f32_32x32x16_bf16 {acc}, {vr(FR+4*fr,4)}, {ar(192+16*(i%4)+4*(2*s+qt),4)}, {c}")
                if qt == 0:
                    pp = p + PD
                    if pp < 12:
                        for r in vread(pp % NF, qp[pp][1], qp[pp][0], par): e(r); lg.issue((par, pp))
                    elif i < 19:
                        for r in vread((pp - 12) % NF, qp[pp-12][1], qp[pp-12][0], 1 - par): e(r); lg.issue((1 - par, pp - 12))
                    else:
                        for r in kread((pp - 12) % NF, pp - 12, 0): e(r); lg.issue(("q0", pp - 12))
                for g in misc.get(slot, []):
                    for r in g: e(r)
                if zero_q: e(zero_q.pop())
    while zero_q: e(zero_q.pop())
    e("s_nop 15")
    for dt in (4, 5, 0, 1, 2, 3):
        for qt in range(2):
            for a in range(2):
                t = 2 * dt + a; src = qacc(dt, qt) + 8 * a
                for j in range(4): e(f"v_pk_mul_f32 {vr(src+2*j,2)}, {vr(src+2*j,2)}, s[{s_c}:{s_c+1}]")
                if t < 4:
                    d = QV + 4 * (2 * t + qt)
                    for j in range(4): e(f"v_cvt_pk_bf16_f32 v{d+j}, v{src+2*j}, v{src+2*j+1}")
                else:
                    d = (224 + 4 * (2 * (t - 4) + qt)) if t < 8 else (192 + 4 * (2 * (t - 8) + qt))
                    for j in range(4): e(f"v_cvt_pk_bf16_f32 v{TMP+j}, v{src+2*j}, v{src+2*j+1}")
                    for j in range(4): e(f"v_accvgpr_write_b32 a{d+j}, v{TMP+j}")
    e("s_nop 1")
    for p in range(12):
        fr = p % NF
        lg.wait(("q0", p))
        for qt in range(2):
            c = "0" if p == 0 else vr(S[0] + 16 * qt, 16)
            e(f"v_mfma_f32_32x32x16_bf16 {vr(S[0]+16*qt,16)}, {vr(FR+4*fr,4)}, {qfrag(p,qt)}, {c}")
            if qt == 0 and p + PD < 12:
                for r in kread((p + PD) % NF, p + PD, 0): e(r); lg.issue(("q0", p + PD))
    for r in adv_krd(0): e(r)
    for p in range(PD):
        for r in kread(p % NF, p, 0): e(r); lg.issue((0, p))
    e("s_nop 15")
    for qt in range(2):
        d = v_t + 1; tmp = v_t + 2
        halfmax(S[0] + 16 * qt, d, tmp)
        for i in range(16):
            e(f"v_sub_f32 v{S[0]+16*qt+i}, v{S[0]+16*qt+i}, v{d}")
            e(f"v_sub_f32 v{NEGM+16*qt+i}, 0, v{d}")
        e(f"v_mov_b32 v{v_l+qt}, 0")
    e("s_nop 7")
    e(f"s_mov_b32 s{s_vrd}, {VBASE + ((20 - 1) % NV) * TILE}")
    return lg


def kernel_a_tail(lg):
    iteration(0, True, True, False, (True, True), chk=None, dma=False, vm_wait=6, lg=lg) if False else None
    global dma_v, adv_vm
    sv, sa = dma_v, adv_vm
    dma_v = lambda isw: []; adv_vm = lambda step: []
    iteration(0, True, True, False, (True, True), chk=None, vm_wait=6, lg=lg)
    dma_v, adv_vm = sv, sa
    e("s_nop 7")
    e(f"s_mov_b32 s{s_cnt}, 15")
    lab("A_LOOP")
    iteration(1, True, True, True, (True, True), chk="RARE1", lg=lg)
    iteration(0, True, True, True, (True, True), chk="RARE0", lg=lg)
    e(f"s_sub_u32 s{s_cnt}, s{s_cnt}, 1"); e(f"s_cmp_lg_u32 s{s_cnt}, 0"); e("s_cbranch_scc1 A_LOOP")
    e("s_waitcnt lgkmcnt(0)")
    vs = [(s, dt) for s in range(2) for dt in range(6)]
    for p in range(PD):
        for r in vread(p % NF, vs[p][1], vs[p][0], 1): e(r); lg.issue((1, p))
    iteration(1, False, True, True, (False, True), chk="RARE2", dma=False, vm_wait=0, lg=lg)
    iteration(0, False, False, True, (False, False), dma=False, vm_wait=0, lg=lg)
    e("s_nop 15")
    for qt in range(2):
        e(f"v_mov_b32 v{v_t}, v{v_l+qt}"); e("s_nop 1")
        e(f"v_permlane32_swap_b32 v{v_l+qt}, v{v_t}"); e("s_nop 1")
        e(f"v_add_f32 v{v_l+qt}, v{v_l+qt}, v{v_t}"); e(f"v_rcp_f32 v{v_l+qt}, v{v_l+qt}")
    T0, T1, T2, T3 = 232, 233, 234, 235
    e(f"v_lshrrev_b32 v{T3}, 5, v{v_lane}")
    e(f"v_bfe_u32 v{T0}, v{v_lane}, 4, 1"); e(f"s_lshl_b32 s{s_tmp}, s{s_wave}, 2"); e(f"v_add_u32 v{T0}, s{s_tmp}, v{T0}")
    e(f"s_mov_b32 s{s_tmp2}, 196608"); e(f"v_mul_lo_u32 v{T0}, v{T0}, s{s_tmp2}")
    e(f"v_lshl_add_u32 v{T0}, v{T3}, 8, v{T0}"); e(f"v_and_b32 v{T1}, 15, v{v_lane}"); e(f"v_lshl_add_u32 v{v_oo}, v{T1}, 4, v{T0}")
    e(f"v_add_u32 v{v_oo+1}, {2*196608}, v{v_oo}")
    e(f"s_mul_i32 s{s_tmp}, s{s_b}, {16*196608}"); e(f"s_mul_i32 s{s_tmp2}, s{s_h}, 6144"); e(f"s_add_u32 s{s_tmp}, s{s_tmp}, s{s_tmp2}")
    e(f"s_add_u32 s{s_tmp2}, s{s_tmp}, 4096")
    k = 0
    for dt in range(6):
        for qt in range(2):
            for a in range(2):
                b = 64 + 12 * (k % 8); k += 1
                src = oacc(dt, qt) + 8 * a
                for j in range(8): e(f"v_accvgpr_read_b32 v{b+j}, a{src+j}")
                for j in range(8): e(f"v_mul_f32 v{b+j}, v{b+j}, v{v_l+qt}")
                for j in range(4): e(f"v_cvt_pk_bf16_f32 v{b+8+j}, v{b+2*j}, v{b+2*j+1}")
                off = dt * 1024 + a * 512
                so = s_tmp if off < 4096 else s_tmp2
                e(f"buffer_store_dwordx4 {vr(b+8,4)}, v{v_oo+qt}, s[{sWS}:{sWS+3}], s{so} offen offset:{off%4096}")
    lab("A_END")
    e("s_endpgm")
    rare("RARE1", 1, True); rare("RARE0", 0, True); rare("RARE2", 1, False)

def kernel_pack():
    K = "pack_kernel"
    L.append(f".globl {K}\n.p2align 8\n.type {K},@function"); lab(K)
    e("s_cmp_ge_u32 s2, 240"); e("s_cbranch_scc1 P_END")
    e("s_load_dwordx2 s[4:5], s[0:1], 32"); e("s_load_dwordx2 s[6:7], s[0:1], 56")
    e("v_lshrrev_b32 v1, 6, v0"); e("v_and_b32 v0, 63, v0"); e("s_nop 0"); e("v_readfirstlane_b32 s3, v1")
    e("s_waitcnt lgkmcnt(0)")
    srd(8, 4, 5, 7864320); srd(12, 6, 7, WS_BYTES)
    e("s_lshl_b32 s16, s2, 2"); e("s_add_u32 s16, s16, s3")
    e("s_mul_hi_u32 s17, s16, 0x33333334")
    e("s_mul_i32 s18, s17, 5"); e("s_sub_u32 s18, s16, s18")
    e("v_lshrrev_b32 v1, 4, v0"); e("v_mul_u32_u24 v1, 10240, v1"); e("v_and_b32 v2, 15, v0"); e("v_lshl_add_u32 v1, v2, 1, v1")
    e("s_mul_i32 s19, s17, 40960"); e("s_lshl_b32 s20, s18, 8"); e("s_add_u32 s19, s19, s20")
    for j in range(8): e(f"v_add_u32 v{2+j}, {1280*j}, v1")
    for i in range(8):
        for j in range(8):
            e(f"buffer_load_ushort v{64+8*i+j}, v{2+j}, s[8:11], s19 offen offset:{32*i}")
        if i == 6: e("s_waitcnt vmcnt(40)")
    e("v_lshlrev_b32 v1, 4, v0")
    e("s_mul_i32 s20, s18, %d" % (8 * 192 * 1024)); e("s_lshl_b32 s21, s17, 10"); e("s_add_u32 s20, s20, s21"); e(f"s_add_u32 s20, s20, {WS_WO}")
    e("s_waitcnt vmcnt(0)")
    for i in range(8):
        for j in range(4): e(f"v_lshl_or_b32 v{16+4*i+j}, v{64+8*i+2*j+1}, 16, v{64+8*i+2*j}")
    for i in range(8):
        e(f"buffer_store_dwordx4 {vr(16+4*i,4)}, v1, s[12:15], s20 offen")
        e(f"s_add_u32 s20, s20, {192*1024}")
    lab("P_END"); e("s_endpgm")

def kernel_b():
    K = "oproj_kernel"
    L.append(f".globl {K}\n.p2align 8\n.type {K},@function"); lab(K)
    e("s_cmp_ge_u32 s2, 256"); e("s_cbranch_scc1 B_END")
    e("s_load_dwordx2 s[4:5], s[0:1], 40"); e("s_load_dwordx2 s[6:7], s[0:1], 56")
    e("v_lshrrev_b32 v1, 6, v0"); e("v_and_b32 v0, 63, v0"); e("s_nop 0"); e("v_readfirstlane_b32 s3, v1")
    e("s_waitcnt lgkmcnt(0)")
    srd(8, 4, 5, 2621440); srd(12, 6, 7, WS_BYTES)
    e("s_and_b32 s16, s2, 7"); e("s_lshr_b32 s17, s2, 3"); e("s_and_b32 s18, s17, 3"); e("s_lshl_b32 s16, s16, 2"); e("s_add_u32 s16, s16, s18")
    e("s_lshr_b32 s17, s17, 2")
    e("s_mul_i32 s20, s16, %d" % (4 * 196608)); e("s_mul_i32 s22, s3, %d" % (48 * 1024)); e("s_add_u32 s20, s20, s22")
    e("s_mul_i32 s21, s17, %d" % (5 * 196608)); e("s_add_u32 s21, s21, s22"); e(f"s_add_u32 s21, s21, {WS_WO}")
    e("v_lshlrev_b32 v1, 4, v0")
    for i in range(1, 5): e(f"v_add_u32 v{1+i}, {196608*i}, v1")
    ACC = 16; FRB = 96; D = 4
    def loads(k):
        b = FRB + 36 * (k % D)
        r = [f"buffer_load_dwordx4 {vr(b+4*i,4)}, v{1+i}, s[12:15], s20 offen offset:{1024*(k%4)}" for i in range(4)]
        r += [f"buffer_load_dwordx4 {vr(b+16+4*i,4)}, v{1+i}, s[12:15], s21 offen offset:{1024*(k%4)}" for i in range(5)]
        return r
    def mf(k, first):
        b = FRB + 36 * (k % D); r = []
        for n in range(5):
            for m in range(4):
                acc = vr(ACC + 4 * (5 * m + n), 4)
                r.append(f"v_mfma_f32_16x16x32_bf16 {acc}, {vr(b+16+4*n,4)}, {vr(b+4*m,4)}, {'0' if first else acc}")
        return r
    for k in range(D - 1):
        for r in loads(k): e(r)
    def group(first, last):
        for k in range(4):
            nl = loads(k + 3)
            adv = (k == 0)
            have = not (last and k >= 1)
            e(f"s_waitcnt vmcnt({18 if (have or True) else 0})" if not last else f"s_waitcnt vmcnt({[18, 18, 9, 0][k] if True else 0})")
            ms = mf(k, first and k == 0)
            if last and k >= 1: nl = []
            for i, m in enumerate(ms):
                e(m)
                if i % 2 == 1 and nl: e(nl.pop(0))
            while nl: e(nl.pop(0))
            if adv: e("s_add_u32 s20, s20, 4096"); e("s_add_u32 s21, s21, 4096")
    group(True, False)
    e("s_mov_b32 s23, 10")
    lab("B_LOOP")
    group(False, False)
    e("s_sub_u32 s23, s23, 1"); e("s_cmp_lg_u32 s23, 0"); e("s_cbranch_scc1 B_LOOP")
    group(False, True)
    e("s_nop 15")
    e("s_mul_i32 s24, s3, 20480"); e("v_lshlrev_b32 v6, 4, v0"); e("v_add_u32 v7, s24, v6")
    for t in range(20): e(f"ds_write_b128 v7, {vr(ACC+4*t,4)} offset:{1024*t}")
    e("s_waitcnt lgkmcnt(0)"); e("s_barrier")
    e("s_mul_i32 s24, s3, 5120"); e("v_add_u32 v7, s24, v6"); e("v_add_u32 v8, 40960, v7")
    for n in range(5):
        for w in range(4):
            e(f"ds_read_b128 {vr(FRB+16*n+4*w,4)}, v{7 + (w//2)} offset:{20480*(w%2)+1024*n}")
    e("s_lshl_b32 s24, s16, 6"); e("s_lshl_b32 s25, s3, 4"); e("s_add_u32 s24, s24, s25")
    e("v_and_b32 v9, 15, v0"); e("v_add_u32 v9, s24, v9"); e("v_mul_u32_u24 v9, 1280, v9")
    e("v_lshrrev_b32 v10, 4, v0"); e("v_lshl_add_u32 v9, v10, 3, v9"); e("s_mul_i32 s25, s17, 160")
    for n in range(5):
        e(f"s_waitcnt lgkmcnt({min(15, 4*(4-n))})")
        b = FRB + 16 * n
        for j in range(4):
            e(f"v_add_f32 v{b+j}, v{b+j}, v{b+4+j}"); e(f"v_add_f32 v{b+8+j}, v{b+8+j}, v{b+12+j}")
        for j in range(4): e(f"v_add_f32 v{b+j}, v{b+j}, v{b+8+j}")
        e(f"v_cvt_pk_bf16_f32 v{b+4}, v{b}, v{b+1}"); e(f"v_cvt_pk_bf16_f32 v{b+5}, v{b+2}, v{b+3}")
        e(f"buffer_store_dwordx2 {vr(b+4,2)}, v9, s[8:11], s25 offen offset:{32*n}")
    lab("B_END"); e("s_endpgm")

def desc(name, vg, acc, sg=102):
    L.append(f""".p2align 6
.amdhsa_kernel {name}
  .amdhsa_next_free_vgpr {vg}
  .amdhsa_next_free_sgpr {sg}
  .amdhsa_accum_offset {acc}
  .amdhsa_group_segment_fixed_size 0
  .amdhsa_kernarg_size 64
  .amdhsa_user_sgpr_count 2
  .amdhsa_user_sgpr_kernarg_segment_ptr 1
  .amdhsa_system_sgpr_workgroup_id_x 1
.end_amdhsa_kernel""")

hdr = open("standalone__mha_block_cached__near_ridge.s.ref").read().split("\n")
hdr = [h for h in hdr if h.startswith(";") and "@launch" not in h and "Override" not in h and "grid=ceil" not in h]
L += hdr
L.append("; @launch kernel=pack_kernel grid=(240,1,1) block=(256,1,1) lds=0")
L.append(f"; @launch kernel=attn_kernel grid=(256,1,1) block=(256,1,1) lds={LDS_A}")
L.append("; @launch kernel=oproj_kernel grid=(256,1,1) block=(256,1,1) lds=81920")
L.append('.amdgcn_target "amdgcn-amd-amdhsa--gfx950"\n.text')
lg = kernel_a(); kernel_a_tail(lg)
kernel_pack(); kernel_b()
L.append('.section .rodata,"a"')
desc("attn_kernel", 512, 256); desc("pack_kernel", 128, 128, 32); desc("oproj_kernel", 256, 256, 32)
open(OUT, "w").write("\n".join(L) + "\n")
print("wrote", OUT, len(L), "lines")
```

```python
import sys, math
OUT = sys.argv[1] if len(sys.argv) > 1 else "standalone__mha_block_cached__near_ridge.s"
OPT = dict(a.split("=") for a in sys.argv[2:])
L = []
X = set(OPT.get("x", "").split(","))
def e(s):
    if "nodma" in X and s.endswith("lds"): return
    if "nolds" in X and s.startswith("ds_read"): return
    if "nosm" in X and (s.startswith("v_exp") or s.startswith("v_cvt_pk") or s.startswith("v_add_f32")): return
    if "nobar" in X and s.startswith("s_barrier"): return
    if "nomfma" in X and s.startswith("v_mfma"): return
    if "nox" in X and s.startswith("buffer_load_dwordx4 a["): return
    if "norare" in X and s.startswith("s_cbranch_vccnz"): return
    if "novm" in X and s.startswith("s_waitcnt vmcnt"): return
    if "notr" in X and s.startswith("ds_read_b64_tr"): return
    L.append("  " + s)
def lab(s): L.append(s + ":")
def vr(a, n): return f"v[{a}:{a+n-1}]"
def ar(a, n): return f"a[{a}:{a+n-1}]"

TILE = 12288
NK = 6; NV = 6
KBASE = 0; VBASE = NK * TILE
LDS_A = 163840
WS_O = 0; WS_WO = 25165824; WS_BYTES = 402653184
CSCALE = (192 ** -0.5) * math.log2(math.e)
import struct
def f32(x): return "0x%08x" % struct.unpack("<I", struct.pack("<f", x))[0]
THR = 65536.0
NT_KV = OPT.get("nt", "1") == "1"

sX, sK, sV, sW, sWS = 8, 12, 16, 20, 24
s_wave, s_b, s_h = 28, 29, 30
s_kd, s_vd = 31, 32
s_km, s_vm = 33, 34
s_krd, s_vrd = 35, 36
s_cnt, s_thr, s_tmp, s_tmp2 = 37, 38, 39, 44
s_c = 40
s_xo = 42
s_w3 = 43
s_kend, s_vend = 45, 46
s_xb = 58
v_lane = 0
v_kd = 1
v_vd = 4
v_wd = 7
v_kb = 10
v_vb = 14
v_ka = [16, 22]
v_xo = 28
v_ps = 30
FR = 32
NF = 6
TMP = 56
S = [64, 96]
P = [128, 144]
NEGM = 160
QV = 192
v_l = 224
v_p = 226
v_t = 228
v_oo = 240
def qfrag(t, qt):
    if t < 4: return vr(QV + 4 * (2 * t + qt), 4)
    if t < 8: return ar(224 + 4 * (2 * (t - 4) + qt), 4)
    return ar(192 + 4 * (2 * (t - 8) + qt), 4)
def oacc(dt, qt): return 16 * (2 * dt + qt)
def qacc(dt, qt): return 64 + 16 * (2 * dt + qt)

def srd(d, lo, hi, nrec):
    e(f"s_mov_b32 s{d}, s{lo}"); e(f"s_and_b32 s{d+1}, s{hi}, 0xffff")
    e(f"s_mov_b32 s{d+2}, {nrec}"); e(f"s_mov_b32 s{d+3}, 0x20000")

STAMP = OPT.get("stamp", "0") == "1"
stamp_n = [0]
def stamp():
    if not STAMP: return
    i = stamp_n[0]; stamp_n[0] += 1
    e(f"s_memtime s[{60+2*i}:{61+2*i}]")
    e("s_waitcnt lgkmcnt(0)") if False else None
def stamp_flush():
    if not STAMP: return
    e("s_memrealtime s[90:91]"); e("s_waitcnt lgkmcnt(0)")
    e(f"s_cmp_lg_u32 s{s_wave}, 0"); e("s_cbranch_scc1 ST_SKIP")
    e("s_lshl_b32 s6, s2, 6"); e("s_add_u32 s6, s6, 0x4000000")
    e("v_mov_b32 v1, s6")
    for i in range(stamp_n[0]):
        e(f"s_sub_u32 s6, s{60+2*i}, s60"); e("v_mov_b32 v2, s6")
        e(f"buffer_store_dword v2, v1, s[{sWS}:{sWS+3}], 0 offen offset:{4*i}")
    e("v_mov_b32 v2, s88"); e(f"buffer_store_dword v2, v1, s[{sWS}:{sWS+3}], 0 offen offset:56")
    e("v_mov_b32 v2, s90"); e(f"buffer_store_dword v2, v1, s[{sWS}:{sWS+3}], 0 offen offset:60")
    lab("ST_SKIP")

class LG:
    def __init__(s): s.n = 0; s.tag = {}
    def issue(s, tag=None):
        s.n += 1
        if tag is not None: s.tag[tag] = s.n
    def wait(s, tag):
        k = s.n - s.tag[tag]
        e(f"s_waitcnt lgkmcnt({min(k,15)})")

def kread(fr, t, par):
    return [f"ds_read_b128 {vr(FR+4*fr,4)}, v{v_ka[par]+(t%4)} offset:{128*(t//4)}"]
def vread(fr, dt, s, par):
    a = v_ka[par] + 4 + (dt & 1)
    o = 128 * (dt >> 1) + 384 * 16 * s
    return [f"ds_read_b64_tr_b16 {vr(FR+4*fr,2)}, v{a} offset:{o}",
            f"ds_read_b64_tr_b16 {vr(FR+4*fr+2,2)}, v{a} offset:{o+384*4}"]

def ring_adv(s, n_slots, base):
    return [f"s_add_u32 s{s}, s{s}, {TILE}", f"s_cmp_ge_u32 s{s}, s{n_slots}", f"s_cselect_b32 s{s}, s{base}, s{s}"]

def dma_k():
    nt = " nt" if NT_KV else ""
    r = [[f"s_mov_b32 m0, s{s_km}", "s_nop 0", f"buffer_load_dwordx4 v{v_kd}, s[{sK}:{sK+3}], s{s_kd} offen{nt} lds"]]
    for i in (1, 2): r.append([f"buffer_load_dwordx4 v{v_kd+i}, s[{sK}:{sK+3}], s{s_kd} offen offset:{1024*i}{nt} lds"])
    return r
def dma_v(isw):
    nt = " nt" if (NT_KV and not isw) else ""
    srd_, vo = (sW, v_wd) if isw else (sV, v_vd)
    r = [[f"s_mov_b32 m0, s{s_vm}", "s_nop 0", f"buffer_load_dwordx4 v{vo}, s[{srd_}:{srd_+3}], s{s_vd} offen{nt} lds"]]
    for i in (1, 2): r.append([f"buffer_load_dwordx4 v{vo+i}, s[{srd_}:{srd_+3}], s{s_vd} offen offset:{1024*i}{nt} lds"])
    return r
def adv_km(): return [f"s_add_u32 s{s_kd}, s{s_kd}, {TILE}", f"s_add_u32 s{s_km}, s{s_km}, {TILE}",
                      f"s_cmp_ge_u32 s{s_km}, s{s_kend}", f"s_cselect_b32 s{s_tmp}, {NK*TILE}, 0", f"s_sub_u32 s{s_km}, s{s_km}, s{s_tmp}"]
def adv_vm(step): return [f"s_add_u32 s{s_vd}, s{s_vd}, {step}", f"s_add_u32 s{s_vm}, s{s_vm}, {TILE}",
                      f"s_cmp_ge_u32 s{s_vm}, s{s_vend}", f"s_cselect_b32 s{s_tmp}, {NV*TILE}, 0", f"s_sub_u32 s{s_vm}, s{s_vm}, s{s_tmp}"]
def adv_krd(par):
    r = [f"s_add_u32 s{s_krd}, s{s_krd}, {TILE}", f"s_cmp_ge_u32 s{s_krd}, {KBASE+NK*TILE}",
         f"s_cselect_b32 s{s_krd}, {KBASE}, s{s_krd}"]
    r += [f"v_add_u32 v{v_ka[par]+i}, s{s_krd}, v{v_kb+i}" for i in range(4)]
    return r
def adv_vrd(par):
    r = [f"s_add_u32 s{s_vrd}, s{s_vrd}, {TILE}", f"s_cmp_ge_u32 s{s_vrd}, {VBASE+NV*TILE}",
         f"s_cselect_b32 s{s_vrd}, {VBASE}, s{s_vrd}"]
    r += [f"v_add_u32 v{v_ka[par]+4+i}, s{s_vrd}, v{v_vb+i}" for i in range(2)]
    return r

def sm_ops(Sc, Pc):
    ops = []; pend = None; first = [True, True]
    idx = 0
    for qt in range(2):
        for pr in range(8):
            ta = TMP + 2 * (idx % 4); tb = ta + 1; idx += 1
            r = Sc + 16 * qt + 2 * pr
            ops.append((2, f"v_exp_f32 v{ta}, v{r}")); ops.append((2, f"v_exp_f32 v{tb}, v{r+1}"))
            if pend: ops += pend
            if first[qt]:
                pend = [(1, f"v_add_f32 v{v_p+qt}, v{ta}, v{tb}")]; first[qt] = False
            else:
                pend = [(1, f"v_add_f32 v{v_p+qt}, v{v_p+qt}, v{ta}"), (1, f"v_add_f32 v{v_p+qt}, v{v_p+qt}, v{tb}")]
            pend.append((1, f"v_cvt_pk_bf16_f32 v{Pc+8*qt+pr}, v{ta}, v{tb}"))
    ops.append((1, "s_nop 0")); ops += pend
    return ops

def halfmax(src16, dst, tmp):
    e(f"v_max3_f32 v{dst}, v{src16}, v{src16+1}, v{src16+2}")
    for i in range(3, 15, 2): e(f"v_max3_f32 v{dst}, v{dst}, v{src16+i}, v{src16+i+1}")
    e(f"v_max_f32 v{dst}, v{dst}, v{src16+15}")
    e(f"v_mov_b32 v{tmp}, v{dst}"); e("s_nop 1")
    e(f"v_permlane32_swap_b32 v{dst}, v{tmp}"); e("s_nop 1")
    e(f"v_max_f32 v{dst}, v{dst}, v{tmp}")

PD = 3
VMW0 = [0]
def iteration(par, do_qk, do_sm, do_pv, nxt, first_c_negm=True, chk=None, dma=True, vm_wait=18, lg=None):
    Sc, Sn, Pc, Pp = S[par], S[1-par], P[par], P[1-par]
    def pairs(dq, dp):
        ks = [("K", t) for t in range(12)] if dq else []
        vs = [("V", (s, dt)) for s in range(2) for dt in range(6)] if dp else []
        if dq and dp:
            o = [ks[0]]
            for i in range(1, 12): o += [ks[i], vs[i-1]]
            o += [vs[11]]
            return o
        return ks + vs
    pl = pairs(do_qk, do_pv)
    npl = pairs(*nxt)
    n = len(pl)
    def rd(item, fr, pr_):
        return kread(fr, item[1], pr_) if item[0] == "K" else vread(fr, item[1][1], item[1][0], pr_)
    q = sm_ops(Sc, Pc) if do_sm else []
    tot = sum(c for c, _ in q)
    nslots = 2 * n
    misc = {}
    def put(slot, grp): misc.setdefault(slot, []).append(grp)
    bslot = 3
    put(bslot, [f"s_waitcnt vmcnt({vm_wait})", "s_barrier"])
    if dma:
        d = dma_k() + [adv_km()] + dma_v(False) + [adv_vm(TILE)]
        step = max(1, (nslots - bslot - 8) // len(d))
        for i, g in enumerate(d): put(min(bslot + 1 + i * step, nslots - 1), g)
    aslot = max(bslot + 1, nslots - 2 * PD - 4)
    if nxt[0]: put(aslot - 2 if aslot - 2 > 0 else 0, adv_krd(1 - par))
    if nxt[1]: put(aslot, adv_vrd(1 - par))
    done = 0; qi = 0
    for p in range(n):
        item = pl[p]; fr = p % NF
        for half in range(2):
            slot = 2 * p + half
            if half == 0: lg.wait((par, p))
            qt = half
            if item[0] == "K":
                t = item[1]
                c = (vr(NEGM + 16 * qt, 16) if first_c_negm else "0") if t == 0 else vr(Sn + 16 * qt, 16)
                e(f"v_mfma_f32_32x32x16_bf16 {vr(Sn+16*qt,16)}, {vr(FR+4*fr,4)}, {qfrag(t,qt)}, {c}")
            else:
                s, dt = item[1]
                o = ar(oacc(dt, qt), 16)
                e(f"v_mfma_f32_32x32x16_bf16 {o}, {vr(FR+4*fr,4)}, {vr(Pp+8*qt+4*s,4)}, {o}")
            if half == 0:
                pp = p + PD
                if pp < n: rr, tg = rd(pl[pp], pp % NF, par), (par, pp)
                elif pp - n < len(npl) and npl: rr, tg = rd(npl[pp - n], (pp - n) % NF, 1 - par), (1 - par, pp - n)
                else: rr = []
                for r in rr: e(r); lg.issue(tg)
            for g in misc.get(slot, []):
                for r in g: e(r)
            lim = tot * (slot + 1) / max(1, nslots - 3)
            while qi < len(q) and done < lim:
                e(q[qi][1]); done += q[qi][0]; qi += 1
    while qi < len(q): e(q[qi][1]); qi += 1
    assert n % NF == 0
    if do_sm:
        if chk:
            e(f"v_max_f32 v{v_t}, v{v_p}, v{v_p+1}")
            e(f"v_cmp_lt_f32 vcc, s{s_thr}, v{v_t}")
            e(f"s_cbranch_vccnz {chk}")
            lab(chk + "_ret")
        e(f"v_add_f32 v{v_l}, v{v_l}, v{v_p}"); e(f"v_add_f32 v{v_l+1}, v{v_l+1}, v{v_p+1}")

def rare(name, par, has_next):
    Sc, Sn, Pc = S[par], S[1-par], P[par]
    lab(name)
    e("s_nop 15"); e("s_nop 15")
    for qt in range(2):
        d = v_t + 1; tmp = v_t + 2; al = v_t + 3
        halfmax(Sc + 16 * qt, d, tmp)
        e(f"v_max_f32 v{d}, 0, v{d}")
        e(f"v_sub_f32 v{al}, 0, v{d}"); e(f"v_exp_f32 v{al}, v{al}"); e("s_nop 1")
        for i in range(16):
            e(f"v_sub_f32 v{Sc+16*qt+i}, v{Sc+16*qt+i}, v{d}")
            if has_next: e(f"v_sub_f32 v{Sn+16*qt+i}, v{Sn+16*qt+i}, v{d}")
            e(f"v_sub_f32 v{NEGM+16*qt+i}, v{NEGM+16*qt+i}, v{d}")
        e(f"v_mul_f32 v{v_l+qt}, v{v_l+qt}, v{al}")
        for dt in range(6):
            for i in range(16):
                a = oacc(dt, qt) + i
                e(f"v_accvgpr_read_b32 v{tmp}, a{a}"); e(f"v_mul_f32 v{tmp}, v{tmp}, v{al}"); e(f"v_accvgpr_write_b32 a{a}, v{tmp}")
    for _, t in sm_ops(Sc, Pc): e(t)
    e("s_nop 7")
    e(f"s_branch {name}_ret")

def kernel_a():
    K = "attn_kernel"
    L.append(f".globl {K}\n.p2align 8\n.type {K},@function"); lab(K)
    e("s_cmp_ge_u32 s2, 256"); e("s_cbranch_scc1 A_END")
    e("s_load_dwordx8 s[48:55], s[0:1], 0")
    e("s_load_dwordx2 s[56:57], s[0:1], 56")
    e(f"v_lshrrev_b32 v1, 6, v0"); e(f"v_and_b32 v{v_lane}, 63, v0"); e("s_nop 0")
    e(f"v_readfirstlane_b32 s{s_wave}, v1")
    e(f"s_lshr_b32 s{s_b}, s2, 5"); e(f"s_and_b32 s{s_h}, s2, 31")
    e("s_waitcnt lgkmcnt(0)")
    stamp()
    if STAMP: e("s_memrealtime s[88:89]")
    e(f"s_mul_i32 s{s_tmp}, s{s_b}, 327680"); e(f"s_add_u32 s48, s48, s{s_tmp}"); e("s_addc_u32 s49, s49, 0")
    e(f"s_mul_i32 s{s_tmp}, s2, 393216")
    e(f"s_add_u32 s50, s50, s{s_tmp}"); e("s_addc_u32 s51, s51, 0"); e(f"s_add_u32 s52, s52, s{s_tmp}"); e("s_addc_u32 s53, s53, 0")
    e(f"s_mul_i32 s{s_tmp}, s{s_h}, 384"); e(f"s_add_u32 s54, s54, s{s_tmp}"); e("s_addc_u32 s55, s55, 0")
    srd(sX, 48, 49, 327680); srd(sK, 50, 51, 393216); srd(sV, 52, 53, 393216)
    srd(sW, 54, 55, 0); e(f"s_sub_u32 s{sW+2}, 7864320, s{s_tmp}")
    srd(sWS, 56, 57, WS_BYTES)
    e(f"s_mov_b32 s{s_c}, {f32(CSCALE)}"); e(f"s_mov_b32 s{s_c+1}, {f32(CSCALE)}"); e(f"s_mov_b32 s{s_thr}, {f32(THR)}")
    e(f"s_mul_i32 s{s_w3}, s{s_wave}, 3072")
    T0, T1, T2, T3 = 228, 229, 230, 231
    e(f"s_mov_b32 s{s_tmp2}, 0xaaab")
    for i in range(3):
        e(f"s_mul_i32 s{s_tmp}, s{s_wave}, 192"); e(f"s_add_u32 s{s_tmp}, s{s_tmp}, {64*i}")
        e(f"v_add_u32 v{T0}, s{s_tmp}, v{v_lane}")
        e(f"v_mul_lo_u32 v{T1}, v{T0}, s{s_tmp2}"); e(f"v_lshrrev_b32 v{T1}, 20, v{T1}")
        e(f"v_mul_u32_u24 v{T2}, 24, v{T1}"); e(f"v_sub_u32 v{T2}, v{T0}, v{T2}")
        e(f"v_bfe_u32 v{T3}, v{T1}, 1, 3"); e(f"v_xor_b32 v{T3}, v{T2}, v{T3}"); e(f"v_lshlrev_b32 v{T3}, 4, v{T3}")
        if "noswzk" in X: e(f"v_lshlrev_b32 v{T3}, 4, v{T2}")
        e(f"v_mul_u32_u24 v{v_kd+i}, 384, v{T1}"); e(f"v_add_u32 v{v_kd+i}, v{v_kd+i}, v{T3}")
        e(f"v_bfe_u32 v{T3}, v{T1}, 1, 1"); e(f"v_lshlrev_b32 v{T3}, 2, v{T3}"); e(f"v_xor_b32 v{T3}, v{T2}, v{T3}"); e(f"v_lshlrev_b32 v{T3}, 4, v{T3}")
        if "noswzv" in X: e(f"v_lshlrev_b32 v{T3}, 4, v{T2}")
        e(f"v_mul_u32_u24 v{v_vd+i}, 384, v{T1}"); e(f"v_add_u32 v{v_vd+i}, v{v_vd+i}, v{T3}")
        e(f"v_mul_u32_u24 v{v_wd+i}, 12288, v{T1}"); e(f"v_add_u32 v{v_wd+i}, v{v_wd+i}, v{T3}")
        if i:
            for b in (v_kd, v_vd, v_wd): e(f"v_subrev_u32 v{b+i}, {1024*i}, v{b+i}")
    e(f"v_and_b32 v{T0}, 31, v{v_lane}")
    e(f"v_and_b32 v{T1}, 19, v{T0}")
    e(f"v_bfe_u32 v{T2}, v{T0}, 2, 1"); e(f"v_lshlrev_b32 v{T2}, 3, v{T2}"); e(f"v_or_b32 v{T1}, v{T1}, v{T2}")
    e(f"v_bfe_u32 v{T2}, v{T0}, 3, 1"); e(f"v_lshlrev_b32 v{T2}, 2, v{T2}"); e(f"v_or_b32 v{T1}, v{T1}, v{T2}")
    e(f"v_bfe_u32 v{T2}, v{T1}, 1, 3")
    e(f"v_lshrrev_b32 v{T3}, 5, v{v_lane}")
    e(f"v_xor_b32 v{T2}, v{T2}, v{T3}")
    e(f"v_mul_u32_u24 v{T1}, 384, v{T1}")
    for tt in range(4):
        e(f"v_xor_b32 v{T0}, {2*tt}, v{T2}"); e(f"v_lshlrev_b32 v{T0}, 4, v{T0}"); e(f"v_add_u32 v{v_kb+tt}, v{T1}, v{T0}")
    e(f"v_bfe_u32 v{T0}, v{v_lane}, 2, 2")
    e(f"v_lshl_add_u32 v{T1}, v{T3}, 3, v{T0}")
    e(f"v_mul_u32_u24 v{T1}, 384, v{T1}")
    e(f"v_bfe_u32 v{T2}, v{v_lane}, 4, 1"); e(f"v_lshl_add_u32 v{T1}, v{T2}, 5, v{T1}")
    e(f"v_and_b32 v{T2}, 1, v{v_lane}"); e(f"v_lshl_add_u32 v{T1}, v{T2}, 4, v{T1}")
    e(f"v_bfe_u32 v{T2}, v{v_lane}, 1, 1"); e(f"v_lshl_add_u32 v{T1}, v{T2}, 3, v{T1}")
    e(f"v_bfe_u32 v{T2}, v{v_lane}, 3, 1")
    e(f"v_lshl_add_u32 v{v_vb}, v{T2}, 6, v{T1}")
    e(f"v_xor_b32 v{T2}, 1, v{T2}"); e(f"v_lshl_add_u32 v{v_vb+1}, v{T2}, 6, v{T1}")
    e(f"v_lshrrev_b32 v{T0}, 3, v{v_lane}"); e(f"s_lshl_b32 s{s_tmp}, s{s_wave}, 6"); e(f"v_add_u32 v{T0}, s{s_tmp}, v{T0}")
    e(f"v_mul_u32_u24 v{T0}, 1280, v{T0}")
    e(f"v_lshrrev_b32 v{T1}, 4, v{v_lane}"); e(f"v_and_b32 v{T2}, 7, v{v_lane}"); e(f"v_xor_b32 v{T2}, v{T2}, v{T1}")
    e(f"v_lshl_add_u32 v{v_xo}, v{T2}, 4, v{T0}")
    e(f"v_xor_b32 v{T2}, 4, v{T2}"); e(f"v_lshl_add_u32 v{v_xo+1}, v{T2}, 4, v{T0}"); e(f"v_add_u32 v{v_xo+1}, {8*1280-1024}, v{v_xo+1}")
    e(f"s_lshl_b32 s{s_tmp}, s{s_wave}, 13"); e(f"s_add_u32 s{s_xb}, s{s_tmp}, 24576")
    e(f"s_mov_b32 s{s_tmp2}, 57344"); e(f"s_cmp_lt_u32 s{s_wave}, 2"); e(f"s_cselect_b32 s{s_tmp2}, s{s_tmp2}, {147456-16384}"); e(f"s_add_u32 s{s_xb+1}, s{s_tmp}, s{s_tmp2}")
    e(f"v_and_b32 v{T0}, 31, v{v_lane}"); e(f"v_bfe_u32 v{T1}, v{T0}, 1, 3"); e(f"v_xor_b32 v{T1}, v{T1}, v{T3}"); e(f"v_lshlrev_b32 v{T0}, 7, v{T0}")
    for j in range(4):
        e(f"v_xor_b32 v{T2}, {2*j}, v{T1}"); e(f"v_lshl_add_u32 v{T2}, v{T2}, 4, v{T0}")
        e(f"v_add_u32 v{TMP+j}, s{s_xb}, v{T2}"); e(f"v_add_u32 v{TMP+4+j}, s{s_xb+1}, v{T2}")
    e(f"s_mov_b32 s{s_kd}, 0"); e(f"s_mov_b32 s{s_vd}, 0")
    e(f"s_add_u32 s{s_km}, s{s_w3}, {KBASE}"); e(f"s_add_u32 s{s_vm}, s{s_w3}, {VBASE}")
    e(f"s_add_u32 s{s_kend}, s{s_km}, {NK*TILE}"); e(f"s_add_u32 s{s_vend}, s{s_vm}, {NV*TILE}")
    WSTEP = 32 * 12288
    def xdma(n):
        g = []
        for k2 in range(4):
            g.append([f"s_add_u32 m0, s{s_xb+(n%2)}, {2048*k2}", f"s_mov_b32 s{s_xo}, {128*n+20480*k2}",
                      f"buffer_load_dwordx4 v{v_xo}, s[{sX}:{sX+3}], s{s_xo} offen lds",
                      f"buffer_load_dwordx4 v{v_xo+1}, s[{sX}:{sX+3}], s{s_xo} offen offset:1024 lds"])
        return g
    def xread(n):
        return [f"ds_read_b128 {ar(192+32*(n%2)+16*ip+4*(2*s+qt),4)}, v{TMP+4*(n%2)+2*ip+s} offset:{4096*qt}"
                for ip in range(2) for s in range(2) for qt in range(2)]
    vm = []
    def emit_groups(gs):
        for g in gs:
            for r in g: e(r)
    def wtile(isw, st): return dma_v(isw) + [adv_vm(WSTEP if st < 19 else TILE) if st != 19 else adv_vm(0) + [f"s_mov_b32 s{s_vd}, 0"]]
    emit_groups(wtile(True, 0)); vm += [("W", 0)] * 3
    emit_groups(xdma(0)); vm += [("x", 0)] * 8
    emit_groups(wtile(True, 1)); vm += [("W", 1)] * 3
    emit_groups(xdma(1)); vm += [("x", 1)] * 8
    for i in range(2, NV - 1):
        emit_groups(wtile(True, i)); vm += [("W", i)] * 3
    def vmwait(tags):
        last = max(k for k, t in enumerate(vm) if t in tags)
        return min(63, len(vm) - 1 - last)
    lg = LG()
    stamp()
    e(f"s_mov_b32 s{s_vrd}, {VBASE + (NV-1)*TILE}")
    for r in adv_vrd(0): e(r)
    e(f"s_waitcnt vmcnt({vmwait([('W',0),('x',0)])})"); e("s_barrier")
    for r in xread(0): e(r); lg.issue(("x", 0))
    qp = [(s, dt) for s in range(2) for dt in range(6)]
    for p in range(PD):
        for r in vread(p % NF, qp[p][1], qp[p][0], 0): e(r); lg.issue((0, p))
    stamp()
    zero_q = [f"v_accvgpr_write_b32 a{i}, 0" for i in range(192)]
    ksched = {12: 0, 13: 1, 16: 2, 17: 3, 18: 4, 19: 5}
    for i in range(20):
        par = i & 1
        misc = {}
        def put(slot, grp, tags=None): misc.setdefault(slot, []).append((grp, tags))
        st = i + NV - 1
        isw = st < 20
        put(3, "BAR")
        grp = []
        if i in ksched:
            for k, g in enumerate(dma_k() + [adv_km()]): grp.append((g, [("K", ksched[i])] if k < 3 else None))
        for k, g in enumerate(wtile(isw, st)): grp.append((g, [("W", st)] if k < 3 else None))
        if i % 2 == 0 and i // 2 + 2 < 10:
            n2 = i // 2 + 2
            for g in xdma(n2): grp.append((g, [("x", n2)] * 2))
        for k, (g, tags) in enumerate(grp): put(4 + (k * 19) // max(len(grp), 8), g, tags)
        if i % 2 == 1 and i < 19: put(12, ("XR", (i + 1) // 2))
        if i < 19: put(14, adv_vrd(1 - par))
        else: put(14, [f"s_mov_b32 s{s_krd}, {KBASE+(NK-1)*TILE}"] + adv_krd(0))
        for p in range(12):
            s, dt = qp[p]; fr = p % NF
            for qt in range(2):
                slot = 2 * p + qt
                if qt == 0:
                    if p == 0 and i % 2 == 0: lg.wait(("x", i // 2))
                    lg.wait((par, p))
                acc = vr(qacc(dt, qt), 16)
                c = "0" if (i == 0 and s == 0) else acc
                e(f"v_mfma_f32_32x32x16_bf16 {acc}, {vr(FR+4*fr,4)}, {ar(192+32*((i//2)%2)+16*(i%2)+4*(2*s+qt),4)}, {c}")
                if qt == 0:
                    pp = p + PD
                    if pp < 12:
                        for r in vread(pp % NF, qp[pp][1], qp[pp][0], par): e(r); lg.issue((par, pp))
                    elif i < 19:
                        for r in vread((pp - 12) % NF, qp[pp-12][1], qp[pp-12][0], 1 - par): e(r); lg.issue((1 - par, pp - 12))
                    else:
                        for r in kread((pp - 12) % NF, pp - 12, 0): e(r); lg.issue(("q0", pp - 12))
                for g, tags in misc.get(slot, []):
                    if g == "BAR":
                        need = [("W", i + 1)] if i < 19 else [("K", 0), ("K", 1), ("W", 22)]
                        e(f"s_waitcnt vmcnt({vmwait(need)})"); e("s_barrier")
                    elif isinstance(g, tuple):
                        e(f"s_waitcnt vmcnt({vmwait([('x', g[1])])})")
                        for r in xread(g[1]): e(r); lg.issue(("x", g[1]))
                    else:
                        for r in g: e(r)
                        if tags: vm += tags
                if zero_q: e(zero_q.pop())
    while zero_q: e(zero_q.pop())
    stamp()
    e("s_nop 15")
    for dt in (4, 5, 0, 1, 2, 3):
        for qt in range(2):
            for a in range(2):
                t = 2 * dt + a; src = qacc(dt, qt) + 8 * a
                for j in range(4): e(f"v_pk_mul_f32 {vr(src+2*j,2)}, {vr(src+2*j,2)}, s[{s_c}:{s_c+1}]")
                if t < 4:
                    d = QV + 4 * (2 * t + qt)
                    for j in range(4): e(f"v_cvt_pk_bf16_f32 v{d+j}, v{src+2*j}, v{src+2*j+1}")
                else:
                    d = (224 + 4 * (2 * (t - 4) + qt)) if t < 8 else (192 + 4 * (2 * (t - 8) + qt))
                    for j in range(4): e(f"v_cvt_pk_bf16_f32 v{TMP+j}, v{src+2*j}, v{src+2*j+1}")
                    for j in range(4): e(f"v_accvgpr_write_b32 a{d+j}, v{TMP+j}")
    e("s_nop 1")
    stamp()
    for p in range(12):
        fr = p % NF
        lg.wait(("q0", p))
        for qt in range(2):
            c = "0" if p == 0 else vr(S[0] + 16 * qt, 16)
            e(f"v_mfma_f32_32x32x16_bf16 {vr(S[0]+16*qt,16)}, {vr(FR+4*fr,4)}, {qfrag(p,qt)}, {c}")
            if qt == 0 and p + PD < 12:
                for r in kread((p + PD) % NF, p + PD, 0): e(r); lg.issue(("q0", p + PD))
    for r in adv_krd(0): e(r)
    for p in range(PD):
        for r in kread(p % NF, p, 0): e(r); lg.issue((0, p))
    e("s_nop 15")
    for qt in range(2):
        d = v_t + 1; tmp = v_t + 2
        halfmax(S[0] + 16 * qt, d, tmp)
        for i in range(16):
            e(f"v_sub_f32 v{S[0]+16*qt+i}, v{S[0]+16*qt+i}, v{d}")
            e(f"v_sub_f32 v{NEGM+16*qt+i}, 0, v{d}")
        e(f"v_mov_b32 v{v_l+qt}, 0")
    e("s_nop 7")
    e(f"s_mov_b32 s{s_vrd}, {VBASE + ((20 - 1) % NV) * TILE}")
    VMW0[0] = vmwait([('K', 2), ('W', 20)])
    return lg


def kernel_a_tail(lg):
    iteration(0, True, True, False, (True, True), chk=None, dma=False, vm_wait=6, lg=lg) if False else None
    global dma_v, adv_vm
    sv, sa = dma_v, adv_vm
    dma_v = lambda isw: []; adv_vm = lambda step: []
    iteration(0, True, True, False, (True, True), chk=None, vm_wait=VMW0[0], lg=lg)
    dma_v, adv_vm = sv, sa
    e("s_nop 7")
    stamp()
    e(f"s_mov_b32 s{s_cnt}, 15")
    lab("A_LOOP")
    iteration(1, True, True, True, (True, True), chk="RARE1", lg=lg)
    iteration(0, True, True, True, (True, True), chk="RARE0", lg=lg)
    e(f"s_sub_u32 s{s_cnt}, s{s_cnt}, 1"); e(f"s_cmp_lg_u32 s{s_cnt}, 0"); e("s_cbranch_scc1 A_LOOP")
    stamp()
    e("s_waitcnt lgkmcnt(0)")
    vs = [(s, dt) for s in range(2) for dt in range(6)]
    for p in range(PD):
        for r in vread(p % NF, vs[p][1], vs[p][0], 1): e(r); lg.issue((1, p))
    iteration(1, False, True, True, (False, True), chk="RARE2", dma=False, vm_wait=0, lg=lg)
    iteration(0, False, False, True, (False, False), dma=False, vm_wait=0, lg=lg)
    stamp()
    e("s_nop 15")
    for qt in range(2):
        e(f"v_mov_b32 v{v_t}, v{v_l+qt}"); e("s_nop 1")
        e(f"v_permlane32_swap_b32 v{v_l+qt}, v{v_t}"); e("s_nop 1")
        e(f"v_add_f32 v{v_l+qt}, v{v_l+qt}, v{v_t}"); e(f"v_rcp_f32 v{v_l+qt}, v{v_l+qt}")
    T0, T1, T2, T3 = 232, 233, 234, 235
    e(f"v_lshrrev_b32 v{T3}, 5, v{v_lane}")
    e(f"v_bfe_u32 v{T0}, v{v_lane}, 4, 1"); e(f"s_lshl_b32 s{s_tmp}, s{s_wave}, 2"); e(f"v_add_u32 v{T0}, s{s_tmp}, v{T0}")
    e(f"s_mov_b32 s{s_tmp2}, 196608"); e(f"v_mul_lo_u32 v{T0}, v{T0}, s{s_tmp2}")
    e(f"v_lshl_add_u32 v{T0}, v{T3}, 8, v{T0}"); e(f"v_and_b32 v{T1}, 15, v{v_lane}"); e(f"v_lshl_add_u32 v{v_oo}, v{T1}, 4, v{T0}")
    e(f"v_add_u32 v{v_oo+1}, {2*196608}, v{v_oo}")
    e(f"s_mul_i32 s{s_tmp}, s{s_b}, {16*196608}"); e(f"s_mul_i32 s{s_tmp2}, s{s_h}, 6144"); e(f"s_add_u32 s{s_tmp}, s{s_tmp}, s{s_tmp2}")
    e(f"s_add_u32 s{s_tmp2}, s{s_tmp}, 4096")
    k = 0
    for dt in range(6):
        for qt in range(2):
            for a in range(2):
                b = 64 + 12 * (k % 8); k += 1
                src = oacc(dt, qt) + 8 * a
                for j in range(8): e(f"v_accvgpr_read_b32 v{b+j}, a{src+j}")
                for j in range(8): e(f"v_mul_f32 v{b+j}, v{b+j}, v{v_l+qt}")
                for j in range(4): e(f"v_cvt_pk_bf16_f32 v{b+8+j}, v{b+2*j}, v{b+2*j+1}")
                off = dt * 1024 + a * 512
                so = s_tmp if off < 4096 else s_tmp2
                e(f"buffer_store_dwordx4 {vr(b+8,4)}, v{v_oo+qt}, s[{sWS}:{sWS+3}], s{so} offen offset:{off%4096}")
    e("s_waitcnt vmcnt(0)") if STAMP else None
    stamp()
    stamp_flush()
    lab("A_END")
    e("s_endpgm")
    rare("RARE1", 1, True); rare("RARE0", 0, True); rare("RARE2", 1, False)

def kernel_pack():
    K = "pack_kernel"
    L.append(f".globl {K}\n.p2align 8\n.type {K},@function"); lab(K)
    e("s_cmp_ge_u32 s2, 240"); e("s_cbranch_scc1 P_END")
    e("s_load_dwordx2 s[4:5], s[0:1], 32"); e("s_load_dwordx2 s[6:7], s[0:1], 56")
    e("v_lshrrev_b32 v1, 6, v0"); e("v_and_b32 v0, 63, v0"); e("s_nop 0"); e("v_readfirstlane_b32 s3, v1")
    e("s_waitcnt lgkmcnt(0)")
    srd(8, 4, 5, 7864320); srd(12, 6, 7, WS_BYTES)
    e("s_lshl_b32 s16, s2, 2"); e("s_add_u32 s16, s16, s3")
    e("s_mul_hi_u32 s17, s16, 0x33333334")
    e("s_mul_i32 s18, s17, 5"); e("s_sub_u32 s18, s16, s18")
    e("v_lshrrev_b32 v1, 4, v0"); e("v_mul_u32_u24 v1, 10240, v1"); e("v_and_b32 v2, 15, v0"); e("v_lshl_add_u32 v1, v2, 1, v1")
    e("s_mul_i32 s19, s17, 40960"); e("s_lshl_b32 s20, s18, 8"); e("s_add_u32 s19, s19, s20")
    for j in range(8): e(f"v_add_u32 v{2+j}, {1280*j}, v1")
    for i in range(8):
        for j in range(8):
            e(f"buffer_load_ushort v{64+8*i+j}, v{2+j}, s[8:11], s19 offen offset:{32*i}")
        if i == 6: e("s_waitcnt vmcnt(40)")
    e("v_lshlrev_b32 v1, 4, v0")
    e("s_mul_i32 s20, s18, %d" % (8 * 192 * 1024)); e("s_lshl_b32 s21, s17, 10"); e("s_add_u32 s20, s20, s21"); e(f"s_add_u32 s20, s20, {WS_WO}")
    e("s_waitcnt vmcnt(0)")
    for i in range(8):
        for j in range(4): e(f"v_lshl_or_b32 v{16+4*i+j}, v{64+8*i+2*j+1}, 16, v{64+8*i+2*j}")
    for i in range(8):
        e(f"buffer_store_dwordx4 {vr(16+4*i,4)}, v1, s[12:15], s20 offen")
        e(f"s_add_u32 s20, s20, {192*1024}")
    lab("P_END"); e("s_endpgm")

def kernel_b():
    K = "oproj_kernel"
    L.append(f".globl {K}\n.p2align 8\n.type {K},@function"); lab(K)
    e("s_cmp_ge_u32 s2, 256"); e("s_cbranch_scc1 B_END")
    e("s_load_dwordx2 s[4:5], s[0:1], 40"); e("s_load_dwordx2 s[6:7], s[0:1], 56")
    e("v_lshrrev_b32 v1, 6, v0"); e("v_and_b32 v0, 63, v0"); e("s_nop 0"); e("v_readfirstlane_b32 s3, v1")
    e("s_waitcnt lgkmcnt(0)")
    srd(8, 4, 5, 2621440); srd(12, 6, 7, WS_BYTES)
    e("s_and_b32 s16, s2, 7"); e("s_lshr_b32 s17, s2, 3"); e("s_and_b32 s18, s17, 3"); e("s_lshl_b32 s16, s16, 2"); e("s_add_u32 s16, s16, s18")
    e("s_lshr_b32 s17, s17, 2")
    e("s_mul_i32 s20, s16, %d" % (4 * 196608)); e("s_mul_i32 s22, s3, %d" % (48 * 1024)); e("s_add_u32 s20, s20, s22")
    e("s_mul_i32 s21, s17, %d" % (5 * 196608)); e("s_add_u32 s21, s21, s22"); e(f"s_add_u32 s21, s21, {WS_WO}")
    e("v_lshlrev_b32 v1, 4, v0")
    for i in range(1, 5): e(f"v_add_u32 v{1+i}, {196608*i}, v1")
    ACC = 16; FRB = 96; D = 4
    def loads(k):
        b = FRB + 36 * (k % D)
        r = [f"buffer_load_dwordx4 {vr(b+4*i,4)}, v{1+i}, s[12:15], s20 offen offset:{1024*(k%4)}" for i in range(4)]
        r += [f"buffer_load_dwordx4 {vr(b+16+4*i,4)}, v{1+i}, s[12:15], s21 offen offset:{1024*(k%4)}" for i in range(5)]
        return r
    def mf(k, first):
        b = FRB + 36 * (k % D); r = []
        for n in range(5):
            for m in range(4):
                acc = vr(ACC + 4 * (5 * m + n), 4)
                r.append(f"v_mfma_f32_16x16x32_bf16 {acc}, {vr(b+16+4*n,4)}, {vr(b+4*m,4)}, {'0' if first else acc}")
        return r
    for k in range(D - 1):
        for r in loads(k): e(r)
    def group(first, last):
        for k in range(4):
            nl = loads(k + 3)
            adv = (k == 0)
            have = not (last and k >= 1)
            e(f"s_waitcnt vmcnt({18 if (have or True) else 0})" if not last else f"s_waitcnt vmcnt({[18, 18, 9, 0][k] if True else 0})")
            ms = mf(k, first and k == 0)
            if last and k >= 1: nl = []
            for i, m in enumerate(ms):
                e(m)
                if i % 2 == 1 and nl: e(nl.pop(0))
            while nl: e(nl.pop(0))
            if adv: e("s_add_u32 s20, s20, 4096"); e("s_add_u32 s21, s21, 4096")
    group(True, False)
    e("s_mov_b32 s23, 10")
    lab("B_LOOP")
    group(False, False)
    e("s_sub_u32 s23, s23, 1"); e("s_cmp_lg_u32 s23, 0"); e("s_cbranch_scc1 B_LOOP")
    group(False, True)
    e("s_nop 15")
    e("s_mul_i32 s24, s3, 20480"); e("v_lshlrev_b32 v6, 4, v0"); e("v_add_u32 v7, s24, v6")
    for t in range(20): e(f"ds_write_b128 v7, {vr(ACC+4*t,4)} offset:{1024*t}")
    e("s_waitcnt lgkmcnt(0)"); e("s_barrier")
    e("s_mul_i32 s24, s3, 5120"); e("v_add_u32 v7, s24, v6"); e("v_add_u32 v8, 40960, v7")
    for n in range(5):
        for w in range(4):
            e(f"ds_read_b128 {vr(FRB+16*n+4*w,4)}, v{7 + (w//2)} offset:{20480*(w%2)+1024*n}")
    e("s_lshl_b32 s24, s16, 6"); e("s_lshl_b32 s25, s3, 4"); e("s_add_u32 s24, s24, s25")
    e("v_and_b32 v9, 15, v0"); e("v_add_u32 v9, s24, v9"); e("v_mul_u32_u24 v9, 1280, v9")
    e("v_lshrrev_b32 v10, 4, v0"); e("v_lshl_add_u32 v9, v10, 3, v9"); e("s_mul_i32 s25, s17, 160")
    for n in range(5):
        e(f"s_waitcnt lgkmcnt({min(15, 4*(4-n))})")
        b = FRB + 16 * n
        for j in range(4):
            e(f"v_add_f32 v{b+j}, v{b+j}, v{b+4+j}"); e(f"v_add_f32 v{b+8+j}, v{b+8+j}, v{b+12+j}")
        for j in range(4): e(f"v_add_f32 v{b+j}, v{b+j}, v{b+8+j}")
        e(f"v_cvt_pk_bf16_f32 v{b+4}, v{b}, v{b+1}"); e(f"v_cvt_pk_bf16_f32 v{b+5}, v{b+2}, v{b+3}")
        e(f"buffer_store_dwordx2 {vr(b+4,2)}, v9, s[8:11], s25 offen offset:{32*n}")
    lab("B_END"); e("s_endpgm")

def desc(name, vg, acc, sg=102):
    L.append(f""".p2align 6
.amdhsa_kernel {name}
  .amdhsa_next_free_vgpr {vg}
  .amdhsa_next_free_sgpr {sg}
  .amdhsa_accum_offset {acc}
  .amdhsa_group_segment_fixed_size 0
  .amdhsa_kernarg_size 64
  .amdhsa_user_sgpr_count 2
  .amdhsa_user_sgpr_kernarg_segment_ptr 1
  .amdhsa_system_sgpr_workgroup_id_x 1
.end_amdhsa_kernel""")

hdr = open("standalone__mha_block_cached__near_ridge.s.ref").read().split("\n")
hdr = [h for h in hdr if h.startswith(";") and "@launch" not in h and "Override" not in h and "grid=ceil" not in h]
L += hdr
L.append("; @launch kernel=pack_kernel grid=(240,1,1) block=(256,1,1) lds=0")
L.append(f"; @launch kernel=attn_kernel grid=(256,1,1) block=(256,1,1) lds={LDS_A}")
L.append("; @launch kernel=oproj_kernel grid=(256,1,1) block=(256,1,1) lds=81920")
L.append('.amdgcn_target "amdgcn-amd-amdhsa--gfx950"\n.text')
lg = kernel_a(); kernel_a_tail(lg)
kernel_pack(); kernel_b()
L.append('.section .rodata,"a"')
desc("attn_kernel", 512, 256); desc("pack_kernel", 128, 128, 32); desc("oproj_kernel", 256, 256, 32)
open(OUT, "w").write("\n".join(L) + "\n")
print("wrote", OUT, len(L), "lines")
```

```python
import sys, math
OUT = sys.argv[1] if len(sys.argv) > 1 else "standalone__mha_block_cached__near_ridge.s"
OPT = dict(a.split("=") for a in sys.argv[2:])
L = []
X = set(OPT.get("x", "").split(","))
def e(s):
    if "nodma" in X and s.endswith("lds"): return
    if "noxdma" in X and s.endswith("lds") and f"s[{sX}:{sX+3}]" in s: return
    if "nowdma" in X and s.endswith("lds") and f"s[{sW}:{sW+3}]" in s: return
    if "noxrd" in X and s.startswith("ds_read_b128 a["): return
    if "nolds" in X and s.startswith("ds_read"): return
    if "nosm" in X and (s.startswith("v_exp") or s.startswith("v_cvt_pk") or s.startswith("v_add_f32")): return
    if "nobar" in X and s.startswith("s_barrier"): return
    if "nomfma" in X and s.startswith("v_mfma"): return
    if "nox" in X and s.startswith("buffer_load_dwordx4 a["): return
    if "norare" in X and s.startswith("s_cbranch_vccnz"): return
    if "novm" in X and s.startswith("s_waitcnt vmcnt"): return
    if "notr" in X and s.startswith("ds_read_b64_tr"): return
    L.append("  " + s)
def lab(s): L.append(s + ":")
def vr(a, n): return f"v[{a}:{a+n-1}]"
def ar(a, n): return f"a[{a}:{a+n-1}]"

TILE = 12288
NK = 6; NV = 6
KBASE = 0; VBASE = NK * TILE
LDS_A = 163840
WS_O = 0; WS_WO = 25165824; WS_BYTES = 402653184
CSCALE = (192 ** -0.5) * math.log2(math.e)
import struct
def f32(x): return "0x%08x" % struct.unpack("<I", struct.pack("<f", x))[0]
THR = 65536.0
OST = ' ' + OPT.get('ost', 'sc0+sc1').replace('+', ' ')
NT_KV = OPT.get("nt", "1") == "1"

sX, sK, sV, sW, sWS = 8, 12, 16, 20, 24
s_wave, s_b, s_h = 28, 29, 30
s_kd, s_vd = 31, 32
s_km, s_vm = 33, 34
s_krd, s_vrd = 35, 36
s_cnt, s_thr, s_tmp, s_tmp2 = 37, 38, 39, 44
s_c = 40
s_xo = 42
s_w3 = 43
s_kend, s_vend = 45, 46
s_xb = 58
sWO = 92
s_pk = 98
v_lane = 0
v_kd = 1
v_vd = 4
v_wd = 7
v_kb = 10
v_vb = 14
v_ka = [16, 22]
v_xo = 28
v_ps = 30
FR = 32
NF = 6
TMP = 56
S = [64, 96]
P = [128, 144]
NEGM = 160
QV = 192
v_l = 224
v_p = 226
v_t = 228
v_oo = 240
v_pk = 242
def qfrag(t, qt):
    if t < 4: return vr(QV + 4 * (2 * t + qt), 4)
    if t < 8: return ar(224 + 4 * (2 * (t - 4) + qt), 4)
    return ar(192 + 4 * (2 * (t - 8) + qt), 4)
def oacc(dt, qt): return 16 * (2 * dt + qt)
def qacc(dt, qt): return 64 + 16 * (2 * dt + qt)

def srd(d, lo, hi, nrec):
    e(f"s_mov_b32 s{d}, s{lo}"); e(f"s_and_b32 s{d+1}, s{hi}, 0xffff")
    e(f"s_mov_b32 s{d+2}, {nrec}"); e(f"s_mov_b32 s{d+3}, 0x20000")

STAMP = OPT.get("stamp", "0") == "1"
stamp_n = [0]
def stamp():
    if not STAMP: return
    i = stamp_n[0]; stamp_n[0] += 1
    e(f"s_memtime s[{60+2*i}:{61+2*i}]")
    e("s_waitcnt lgkmcnt(0)") if False else None
def stamp_flush():
    if not STAMP: return
    e("s_memrealtime s[90:91]"); e("s_waitcnt lgkmcnt(0)")
    e(f"s_cmp_lg_u32 s{s_wave}, 0"); e("s_cbranch_scc1 ST_SKIP")
    e("s_lshl_b32 s6, s2, 6"); e("s_add_u32 s6, s6, 0x4000000")
    e("v_mov_b32 v1, s6")
    for i in range(stamp_n[0]):
        e(f"s_sub_u32 s6, s{60+2*i}, s60"); e("v_mov_b32 v2, s6")
        e(f"buffer_store_dword v2, v1, s[{sWS}:{sWS+3}], 0 offen offset:{4*i}")
    e("v_mov_b32 v2, s88"); e(f"buffer_store_dword v2, v1, s[{sWS}:{sWS+3}], 0 offen offset:56")
    e("v_mov_b32 v2, s90"); e(f"buffer_store_dword v2, v1, s[{sWS}:{sWS+3}], 0 offen offset:60")
    lab("ST_SKIP")

class LG:
    def __init__(s): s.n = 0; s.tag = {}
    def issue(s, tag=None):
        s.n += 1
        if tag is not None: s.tag[tag] = s.n
    def wait(s, tag):
        k = s.n - s.tag[tag]
        e(f"s_waitcnt lgkmcnt({min(k,15)})")

def kread(fr, t, par):
    return [f"ds_read_b128 {vr(FR+4*fr,4)}, v{v_ka[par]+(t%4)} offset:{128*(t//4)}"]
def vread(fr, dt, s, par):
    a = v_ka[par] + 4 + (dt & 1)
    o = 128 * (dt >> 1) + 384 * 16 * s
    return [f"ds_read_b64_tr_b16 {vr(FR+4*fr,2)}, v{a} offset:{o}",
            f"ds_read_b64_tr_b16 {vr(FR+4*fr+2,2)}, v{a} offset:{o+384*4}"]

def ring_adv(s, n_slots, base):
    return [f"s_add_u32 s{s}, s{s}, {TILE}", f"s_cmp_ge_u32 s{s}, s{n_slots}", f"s_cselect_b32 s{s}, s{base}, s{s}"]

def dma_k():
    nt = " nt" if NT_KV else ""
    r = [[f"s_mov_b32 m0, s{s_km}", "s_nop 0", f"buffer_load_dwordx4 v{v_kd}, s[{sK}:{sK+3}], s{s_kd} offen{nt} lds"]]
    for i in (1, 2): r.append([f"buffer_load_dwordx4 v{v_kd+i}, s[{sK}:{sK+3}], s{s_kd} offen offset:{1024*i}{nt} lds"])
    return r
def dma_v(isw):
    nt = " nt" if (NT_KV and not isw) else ""
    srd_, vo = (sW, v_wd) if isw else (sV, v_vd)
    r = [[f"s_mov_b32 m0, s{s_vm}", "s_nop 0", f"buffer_load_dwordx4 v{vo}, s[{srd_}:{srd_+3}], s{s_vd} offen{nt} lds"]]
    for i in (1, 2): r.append([f"buffer_load_dwordx4 v{vo+i}, s[{srd_}:{srd_+3}], s{s_vd} offen offset:{1024*i}{nt} lds"])
    return r
def adv_km(): return [f"s_add_u32 s{s_kd}, s{s_kd}, {TILE}", f"s_add_u32 s{s_km}, s{s_km}, {TILE}",
                      f"s_cmp_ge_u32 s{s_km}, s{s_kend}", f"s_cselect_b32 s{s_tmp}, {NK*TILE}, 0", f"s_sub_u32 s{s_km}, s{s_km}, s{s_tmp}"]
def adv_vm(step): return [f"s_add_u32 s{s_vd}, s{s_vd}, {step}", f"s_add_u32 s{s_vm}, s{s_vm}, {TILE}",
                      f"s_cmp_ge_u32 s{s_vm}, s{s_vend}", f"s_cselect_b32 s{s_tmp}, {NV*TILE}, 0", f"s_sub_u32 s{s_vm}, s{s_vm}, s{s_tmp}"]
def adv_krd(par):
    r = [f"s_add_u32 s{s_krd}, s{s_krd}, {TILE}", f"s_cmp_ge_u32 s{s_krd}, {KBASE+NK*TILE}",
         f"s_cselect_b32 s{s_krd}, {KBASE}, s{s_krd}"]
    r += [f"v_add_u32 v{v_ka[par]+i}, s{s_krd}, v{v_kb+i}" for i in range(4)]
    return r
def adv_vrd(par):
    r = [f"s_add_u32 s{s_vrd}, s{s_vrd}, {TILE}", f"s_cmp_ge_u32 s{s_vrd}, {VBASE+NV*TILE}",
         f"s_cselect_b32 s{s_vrd}, {VBASE}, s{s_vrd}"]
    r += [f"v_add_u32 v{v_ka[par]+4+i}, s{s_vrd}, v{v_vb+i}" for i in range(2)]
    return r

def sm_ops(Sc, Pc):
    ops = []; pend = None; first = [True, True]
    idx = 0
    for qt in range(2):
        for pr in range(8):
            ta = TMP + 2 * (idx % 4); tb = ta + 1; idx += 1
            r = Sc + 16 * qt + 2 * pr
            ops.append((2, f"v_exp_f32 v{ta}, v{r}")); ops.append((2, f"v_exp_f32 v{tb}, v{r+1}"))
            if pend: ops += pend
            if first[qt]:
                pend = [(1, f"v_add_f32 v{v_p+qt}, v{ta}, v{tb}")]; first[qt] = False
            else:
                pend = [(1, f"v_add_f32 v{v_p+qt}, v{v_p+qt}, v{ta}"), (1, f"v_add_f32 v{v_p+qt}, v{v_p+qt}, v{tb}")]
            pend.append((1, f"v_cvt_pk_bf16_f32 v{Pc+8*qt+pr}, v{ta}, v{tb}"))
    ops.append((1, "s_nop 0")); ops += pend
    return ops

def halfmax(src16, dst, tmp):
    e(f"v_max3_f32 v{dst}, v{src16}, v{src16+1}, v{src16+2}")
    for i in range(3, 15, 2): e(f"v_max3_f32 v{dst}, v{dst}, v{src16+i}, v{src16+i+1}")
    e(f"v_max_f32 v{dst}, v{dst}, v{src16+15}")
    e(f"v_mov_b32 v{tmp}, v{dst}"); e("s_nop 1")
    e(f"v_permlane32_swap_b32 v{dst}, v{tmp}"); e("s_nop 1")
    e(f"v_max_f32 v{dst}, v{dst}, v{tmp}")

PD = 3
VMW0 = [0]
def iteration(par, do_qk, do_sm, do_pv, nxt, first_c_negm=True, chk=None, dma=True, vm_wait=18, lg=None, extra=None):
    Sc, Sn, Pc, Pp = S[par], S[1-par], P[par], P[1-par]
    def pairs(dq, dp):
        ks = [("K", t) for t in range(12)] if dq else []
        vs = [("V", (s, dt)) for s in range(2) for dt in range(6)] if dp else []
        if dq and dp:
            o = [ks[0]]
            for i in range(1, 12): o += [ks[i], vs[i-1]]
            o += [vs[11]]
            return o
        return ks + vs
    pl = pairs(do_qk, do_pv)
    npl = pairs(*nxt)
    n = len(pl)
    def rd(item, fr, pr_):
        return kread(fr, item[1], pr_) if item[0] == "K" else vread(fr, item[1][1], item[1][0], pr_)
    q = sm_ops(Sc, Pc) if do_sm else []
    tot = sum(c for c, _ in q)
    nslots = 2 * n
    misc = {}
    def put(slot, grp): misc.setdefault(slot, []).append(grp)
    bslot = 3
    if vm_wait is not None: put(bslot, [f"s_waitcnt vmcnt({vm_wait})", "s_barrier"])
    if dma:
        d = dma_k() + [adv_km()] + dma_v(False) + [adv_vm(TILE)]
        step = max(1, (nslots - bslot - 8) // len(d))
        for i, g in enumerate(d): put(min(bslot + 1 + i * step, nslots - 1), g)
    if extra:
        for i, g in enumerate(extra): put(min(bslot + 1 + 2 * i, nslots - 1), g)
    aslot = max(bslot + 1, nslots - 2 * PD - 4)
    if nxt[0]: put(aslot - 2 if aslot - 2 > 0 else 0, adv_krd(1 - par))
    if nxt[1]: put(aslot, adv_vrd(1 - par))
    done = 0; qi = 0
    for p in range(n):
        item = pl[p]; fr = p % NF
        for half in range(2):
            slot = 2 * p + half
            if half == 0: lg.wait((par, p))
            qt = half
            if item[0] == "K":
                t = item[1]
                c = (vr(NEGM + 16 * qt, 16) if first_c_negm else "0") if t == 0 else vr(Sn + 16 * qt, 16)
                e(f"v_mfma_f32_32x32x16_bf16 {vr(Sn+16*qt,16)}, {vr(FR+4*fr,4)}, {qfrag(t,qt)}, {c}")
            else:
                s, dt = item[1]
                o = ar(oacc(dt, qt), 16)
                e(f"v_mfma_f32_32x32x16_bf16 {o}, {vr(FR+4*fr,4)}, {vr(Pp+8*qt+4*s,4)}, {o}")
            if half == 0:
                pp = p + PD
                if pp < n: rr, tg = rd(pl[pp], pp % NF, par), (par, pp)
                elif pp - n < len(npl) and npl: rr, tg = rd(npl[pp - n], (pp - n) % NF, 1 - par), (1 - par, pp - n)
                else: rr = []
                for r in rr: e(r); lg.issue(tg)
            for g in misc.get(slot, []):
                for r in g: e(r)
            lim = tot * (slot + 1) / max(1, nslots - 3)
            while qi < len(q) and done < lim:
                e(q[qi][1]); done += q[qi][0]; qi += 1
    while qi < len(q): e(q[qi][1]); qi += 1
    assert n % NF == 0
    if do_sm:
        if chk:
            e(f"v_max_f32 v{v_t}, v{v_p}, v{v_p+1}")
            e(f"v_cmp_lt_f32 vcc, s{s_thr}, v{v_t}")
            e(f"s_cbranch_vccnz {chk}")
            lab(chk + "_ret")
        e(f"v_add_f32 v{v_l}, v{v_l}, v{v_p}"); e(f"v_add_f32 v{v_l+1}, v{v_l+1}, v{v_p+1}")

def rare(name, par, has_next):
    Sc, Sn, Pc = S[par], S[1-par], P[par]
    lab(name)
    e("s_nop 15"); e("s_nop 15")
    for qt in range(2):
        d = v_t + 1; tmp = v_t + 2; al = v_t + 3
        halfmax(Sc + 16 * qt, d, tmp)
        e(f"v_max_f32 v{d}, 0, v{d}")
        e(f"v_sub_f32 v{al}, 0, v{d}"); e(f"v_exp_f32 v{al}, v{al}"); e("s_nop 1")
        for i in range(16):
            e(f"v_sub_f32 v{Sc+16*qt+i}, v{Sc+16*qt+i}, v{d}")
            if has_next: e(f"v_sub_f32 v{Sn+16*qt+i}, v{Sn+16*qt+i}, v{d}")
            e(f"v_sub_f32 v{NEGM+16*qt+i}, v{NEGM+16*qt+i}, v{d}")
        e(f"v_mul_f32 v{v_l+qt}, v{v_l+qt}, v{al}")
        for dt in range(6):
            for i in range(16):
                a = oacc(dt, qt) + i
                e(f"v_accvgpr_read_b32 v{tmp}, a{a}"); e(f"v_mul_f32 v{tmp}, v{tmp}, v{al}"); e(f"v_accvgpr_write_b32 a{a}, v{tmp}")
    for _, t in sm_ops(Sc, Pc): e(t)
    e("s_nop 7")
    e(f"s_branch {name}_ret")

def kernel_a():
    K = "attn_kernel"
    L.append(f".globl {K}\n.p2align 8\n.type {K},@function"); lab(K)
    e("s_cmp_ge_u32 s2, 256"); e("s_cbranch_scc1 A_END")
    e("s_load_dwordx8 s[48:55], s[0:1], 0")
    e("s_load_dwordx2 s[56:57], s[0:1], 56")
    e("s_load_dwordx2 s[96:97], s[0:1], 32")
    e(f"v_lshrrev_b32 v1, 6, v0"); e(f"v_and_b32 v{v_lane}, 63, v0"); e("s_nop 0")
    e(f"v_readfirstlane_b32 s{s_wave}, v1")
    e(f"s_lshr_b32 s{s_b}, s2, 5"); e(f"s_and_b32 s{s_h}, s2, 31")
    stamp()
    if STAMP: e("s_memrealtime s[88:89]")
    e(f"s_mul_i32 s{s_w3}, s{s_wave}, 3072")
    T0, T1, T2, T3 = 228, 229, 230, 231
    e(f"s_mov_b32 s{s_tmp2}, 0xaaab")
    for i in range(3):
        e(f"s_mul_i32 s{s_tmp}, s{s_wave}, 192"); e(f"s_add_u32 s{s_tmp}, s{s_tmp}, {64*i}")
        e(f"v_add_u32 v{T0}, s{s_tmp}, v{v_lane}")
        e(f"v_mul_lo_u32 v{T1}, v{T0}, s{s_tmp2}"); e(f"v_lshrrev_b32 v{T1}, 20, v{T1}")
        e(f"v_mul_u32_u24 v{T2}, 24, v{T1}"); e(f"v_sub_u32 v{T2}, v{T0}, v{T2}")
        e(f"v_bfe_u32 v{T3}, v{T1}, 1, 3"); e(f"v_xor_b32 v{T3}, v{T2}, v{T3}"); e(f"v_lshlrev_b32 v{T3}, 4, v{T3}")
        if "noswzk" in X: e(f"v_lshlrev_b32 v{T3}, 4, v{T2}")
        e(f"v_mul_u32_u24 v{v_kd+i}, 384, v{T1}"); e(f"v_add_u32 v{v_kd+i}, v{v_kd+i}, v{T3}")
        e(f"v_bfe_u32 v{T3}, v{T1}, 1, 1"); e(f"v_lshlrev_b32 v{T3}, 2, v{T3}"); e(f"v_xor_b32 v{T3}, v{T2}, v{T3}"); e(f"v_lshlrev_b32 v{T3}, 4, v{T3}")
        if "noswzv" in X: e(f"v_lshlrev_b32 v{T3}, 4, v{T2}")
        e(f"v_mul_u32_u24 v{v_vd+i}, 384, v{T1}"); e(f"v_add_u32 v{v_vd+i}, v{v_vd+i}, v{T3}")
        e(f"v_mul_u32_u24 v{v_wd+i}, 12288, v{T1}"); e(f"v_add_u32 v{v_wd+i}, v{v_wd+i}, v{T3}")
        if i:
            for b in (v_kd, v_vd, v_wd): e(f"v_subrev_u32 v{b+i}, {1024*i}, v{b+i}")
    e(f"v_and_b32 v{T0}, 31, v{v_lane}")
    e(f"v_and_b32 v{T1}, 19, v{T0}")
    e(f"v_bfe_u32 v{T2}, v{T0}, 2, 1"); e(f"v_lshlrev_b32 v{T2}, 3, v{T2}"); e(f"v_or_b32 v{T1}, v{T1}, v{T2}")
    e(f"v_bfe_u32 v{T2}, v{T0}, 3, 1"); e(f"v_lshlrev_b32 v{T2}, 2, v{T2}"); e(f"v_or_b32 v{T1}, v{T1}, v{T2}")
    e(f"v_bfe_u32 v{T2}, v{T1}, 1, 3")
    e(f"v_lshrrev_b32 v{T3}, 5, v{v_lane}")
    e(f"v_xor_b32 v{T2}, v{T2}, v{T3}")
    e(f"v_mul_u32_u24 v{T1}, 384, v{T1}")
    for tt in range(4):
        e(f"v_xor_b32 v{T0}, {2*tt}, v{T2}"); e(f"v_lshlrev_b32 v{T0}, 4, v{T0}"); e(f"v_add_u32 v{v_kb+tt}, v{T1}, v{T0}")
    e(f"v_bfe_u32 v{T0}, v{v_lane}, 2, 2")
    e(f"v_lshl_add_u32 v{T1}, v{T3}, 3, v{T0}")
    e(f"v_mul_u32_u24 v{T1}, 384, v{T1}")
    e(f"v_bfe_u32 v{T2}, v{v_lane}, 4, 1"); e(f"v_lshl_add_u32 v{T1}, v{T2}, 5, v{T1}")
    e(f"v_and_b32 v{T2}, 1, v{v_lane}"); e(f"v_lshl_add_u32 v{T1}, v{T2}, 4, v{T1}")
    e(f"v_bfe_u32 v{T2}, v{v_lane}, 1, 1"); e(f"v_lshl_add_u32 v{T1}, v{T2}, 3, v{T1}")
    e(f"v_bfe_u32 v{T2}, v{v_lane}, 3, 1")
    e(f"v_lshl_add_u32 v{v_vb}, v{T2}, 6, v{T1}")
    e(f"v_xor_b32 v{T2}, 1, v{T2}"); e(f"v_lshl_add_u32 v{v_vb+1}, v{T2}, 6, v{T1}")
    e(f"v_lshrrev_b32 v{T0}, 3, v{v_lane}"); e(f"s_lshl_b32 s{s_tmp}, s{s_wave}, 6"); e(f"v_add_u32 v{T0}, s{s_tmp}, v{T0}")
    e(f"v_mul_u32_u24 v{T0}, 1280, v{T0}")
    e(f"v_lshrrev_b32 v{T1}, 4, v{v_lane}"); e(f"v_and_b32 v{T2}, 7, v{v_lane}")
    if "noswzx" not in X: e(f"v_xor_b32 v{T2}, v{T2}, v{T1}")
    e(f"v_lshl_add_u32 v{v_xo}, v{T2}, 4, v{T0}")
    if "noswzx" not in X: e(f"v_xor_b32 v{T2}, 4, v{T2}")
    e(f"v_lshl_add_u32 v{v_xo+1}, v{T2}, 4, v{T0}"); e(f"v_add_u32 v{v_xo+1}, {8*1280-1024}, v{v_xo+1}")
    e(f"s_lshl_b32 s{s_tmp}, s{s_wave}, 13"); e(f"s_add_u32 s{s_xb}, s{s_tmp}, 24576")
    e(f"s_mov_b32 s{s_tmp2}, 57344"); e(f"s_cmp_lt_u32 s{s_wave}, 2"); e(f"s_cselect_b32 s{s_tmp2}, s{s_tmp2}, {147456-16384}"); e(f"s_add_u32 s{s_xb+1}, s{s_tmp}, s{s_tmp2}")
    e(f"v_and_b32 v{T0}, 31, v{v_lane}"); e(f"v_bfe_u32 v{T1}, v{T0}, 1, 3"); e(f"v_xor_b32 v{T1}, v{T1}, v{T3}"); e(f"v_lshlrev_b32 v{T0}, 7, v{T0}")
    for j in range(4):
        e(f"v_xor_b32 v{T2}, {2*j}, v{T1}"); e(f"v_lshl_add_u32 v{T2}, v{T2}, 4, v{T0}")
        e(f"v_add_u32 v{TMP+j}, s{s_xb}, v{T2}"); e(f"v_add_u32 v{TMP+4+j}, s{s_xb+1}, v{T2}")
    e(f"s_mov_b32 s{s_kd}, 0"); e(f"s_mov_b32 s{s_vd}, 0")
    e(f"s_add_u32 s{s_km}, s{s_w3}, {KBASE}"); e(f"s_add_u32 s{s_vm}, s{s_w3}, {VBASE}")
    e(f"s_add_u32 s{s_kend}, s{s_km}, {NK*TILE}"); e(f"s_add_u32 s{s_vend}, s{s_vm}, {NV*TILE}")
    e("s_waitcnt lgkmcnt(0)")
    if "qsame" in X: e(f"s_mov_b32 s{s_b}, 0"); e(f"s_mov_b32 s{s_h}, 0")
    e(f"s_mul_i32 s{s_tmp}, s{s_b}, 327680"); e(f"s_add_u32 s48, s48, s{s_tmp}"); e("s_addc_u32 s49, s49, 0")
    e(f"s_mul_i32 s{s_tmp}, s2, 393216")
    e(f"s_add_u32 s50, s50, s{s_tmp}"); e("s_addc_u32 s51, s51, 0"); e(f"s_add_u32 s52, s52, s{s_tmp}"); e("s_addc_u32 s53, s53, 0")
    e(f"s_mul_i32 s{s_tmp}, s{s_h}, 384"); e(f"s_add_u32 s54, s54, s{s_tmp}"); e("s_addc_u32 s55, s55, 0")
    srd(sX, 48, 49, 327680);
    srd(sW, 54, 55, 0); e(f"s_sub_u32 s{sW+2}, 7864320, s{s_tmp}")
    WSTEP = 32 * 12288
    def xdma(n):
        g = []
        for k2 in range(4):
            g.append([f"s_add_u32 m0, s{s_xb+(n%2)}, {2048*k2}", f"s_mov_b32 s{s_xo}, {128*n+20480*k2}",
                      f"buffer_load_dwordx4 v{v_xo}, s[{sX}:{sX+3}], s{s_xo} offen lds",
                      f"buffer_load_dwordx4 v{v_xo+1}, s[{sX}:{sX+3}], s{s_xo} offen offset:1024 lds"])
        return g
    def xread(n):
        return [f"ds_read_b128 {ar(192+32*(n%2)+16*ip+4*(2*s+qt),4)}, v{TMP+4*(n%2)+2*ip+s} offset:{4096*qt}"
                for ip in range(2) for s in range(2) for qt in range(2)]
    vm = []
    def emit_groups(gs):
        for g in gs:
            for r in g: e(r)
    def wtile(isw, st): return dma_v(isw) + [adv_vm(WSTEP if st < 19 else TILE) if st != 19 else adv_vm(0) + [f"s_mov_b32 s{s_vd}, 0"]]
    emit_groups(wtile(True, 0)); vm += [("W", 0)] * 3
    emit_groups(xdma(0)); vm += [("x", 0)] * 8
    emit_groups(wtile(True, 1)); vm += [("W", 1)] * 3
    srd(sK, 50, 51, 393216); srd(sV, 52, 53, 393216)
    srd(sWS, 56, 57, WS_BYTES)
    srd(sWO, 96, 97, 7864320)
    e("s_cmp_ge_u32 s2, 240"); e(f"s_cselect_b32 s{sWO+2}, 0, s{sWO+2}")
    e(f"s_lshl_b32 s{s_tmp}, s2, 2"); e(f"s_add_u32 s{s_tmp}, s{s_tmp}, s{s_wave}")
    e(f"s_mul_hi_u32 s{s_tmp2}, s{s_tmp}, 0x33333334")
    e(f"s_mul_i32 s{s_pk}, s{s_tmp2}, 5"); e(f"s_sub_u32 s{s_tmp}, s{s_tmp}, s{s_pk}")
    e(f"s_mul_i32 s{s_pk}, s{s_tmp2}, 40960"); e(f"s_lshl_b32 s{s_pk+1}, s{s_tmp}, 8"); e(f"s_add_u32 s{s_pk}, s{s_pk}, s{s_pk+1}")
    e(f"s_mul_i32 s{s_pk+1}, s{s_tmp}, {8*192*1024}"); e(f"s_lshl_b32 s{s_tmp2}, s{s_tmp2}, 10")
    e(f"s_add_u32 s{s_pk+1}, s{s_pk+1}, s{s_tmp2}"); e(f"s_add_u32 s{s_pk+1}, s{s_pk+1}, {WS_WO}")
    e(f"s_lshl_b32 s{s_pk+2}, s{s_wave}, 13")
    e(f"s_mov_b32 s{s_c}, {f32(CSCALE)}"); e(f"s_mov_b32 s{s_c+1}, {f32(CSCALE)}"); e(f"s_mov_b32 s{s_thr}, {f32(THR)}")
    for i in range(192): e(f"v_accvgpr_write_b32 a{i}, 0")
    def vmwait(tags):
        last = max(k for k, t in enumerate(vm) if t in tags)
        return min(63, len(vm) - 1 - last)
    lg = LG()
    stamp()
    e(f"s_mov_b32 s{s_vrd}, {VBASE + (NV-1)*TILE}")
    for r in adv_vrd(0): e(r)
    e(f"s_waitcnt vmcnt({vmwait([('W',0),('x',0)])})"); e("s_barrier")
    for r in xread(0): e(r); lg.issue(("x", 0))
    qp = [(s, dt) for s in range(2) for dt in range(6)]
    for p in range(PD):
        for r in vread(p % NF, qp[p][1], qp[p][0], 0): e(r); lg.issue((0, p))
    stamp()
    zero_q = []
    ksched = {12: 0, 13: 1, 16: 2, 17: 3, 18: 4, 19: 5}
    if "nok" in X: ksched = {}
    for i in range(20):
        par = i & 1
        misc = {}
        def put(slot, grp, tags=None): misc.setdefault(slot, []).append((grp, tags))
        st = i + NV - 1
        isw = st < 20
        put(3, "BAR")
        grp = []
        if i in ksched:
            for k, g in enumerate(dma_k() + [adv_km()]): grp.append((g, [("K", ksched[i])] if k < 3 else None))
        xs = {0: [(1, k) for k in range(4)], 1: [(2, k) for k in range(4)]}.get(i, [(i // 2 + 2, 2 * (i % 2) + k) for k in range(2)] if i // 2 + 2 < 10 else [])
        xg = []
        for n2, k2 in xs:
            g = xdma(n2)[k2]
            xg.append((g[:3], [("x", n2)])); xg.append(([g[0], g[1], g[3]], [("x", n2)]))
        wg_ = []
        for st in {0: [2, 3], 1: [4, 5], 2: [6, 7]}.get(i, [i + 5]):
            wt = wtile(st < 20, st)
            for k in range(3): wg_.append(([f"s_mov_b32 m0, s{s_vm}", "s_nop 0", wt[k][-1]] + (wt[3] if k == 2 else []), [("W", st)]))
        if "noilv" in X or i >= 16 or i == 0: grp += (xg + wg_) if i == 0 else (wg_ + xg)
        else:
            a_, b_ = list(wg_), list(xg)
            while a_ or b_:
                if a_: grp.append(a_.pop(0))
                if b_: grp.append(b_.pop(0))
        last = int(OPT.get("qlast", "23"))
        for k, (g, tags) in enumerate(grp): put(4 + (k * (last - 4 + 1)) // len(grp), g, tags)
        if i % 2 == 1 and i < 19: put(12, ("XR", (i + 1) // 2))
        if i < 19: put(14, adv_vrd(1 - par))
        else: put(14, [f"s_mov_b32 s{s_krd}, {KBASE+(NK-1)*TILE}"] + adv_krd(0))
        for p in range(12):
            s, dt = qp[p]; fr = p % NF
            for qt in range(2):
                slot = 2 * p + qt
                if qt == 0:
                    if p == 0 and i % 2 == 0: lg.wait(("x", i // 2))
                    lg.wait((par, p))
                acc = vr(qacc(dt, qt), 16)
                c = "0" if (i == 0 and s == 0) else acc
                e(f"v_mfma_f32_32x32x16_bf16 {acc}, {vr(FR+4*fr,4)}, {ar(192+32*((i//2)%2)+16*(i%2)+4*(2*s+qt),4)}, {c}")
                if qt == 0:
                    pp = p + PD
                    if pp < 12:
                        for r in vread(pp % NF, qp[pp][1], qp[pp][0], par): e(r); lg.issue((par, pp))
                    elif i < 19:
                        for r in vread((pp - 12) % NF, qp[pp-12][1], qp[pp-12][0], 1 - par): e(r); lg.issue((1 - par, pp - 12))
                    else:
                        for r in kread((pp - 12) % NF, pp - 12, 0): e(r); lg.issue(("q0", pp - 12))
                for g, tags in misc.get(slot, []):
                    if g == "BAR":
                        need = [("W", i + 1)] if i < 19 else [("K", 0), ("K", 1), ("W", 22)]
                        if "nok" in X: need = [("W", 20)]
                        e(f"s_waitcnt vmcnt({vmwait(need)})"); e("s_barrier")
                    elif isinstance(g, tuple):
                        e(f"s_waitcnt vmcnt({vmwait([('x', g[1])])})")
                        for r in xread(g[1]): e(r); lg.issue(("x", g[1]))
                    else:
                        for r in g: e(r)
                        if tags: vm += tags
                if zero_q: e(zero_q.pop())
    while zero_q: e(zero_q.pop())
    stamp()
    e("s_nop 15")
    for dt in (4, 5, 0, 1, 2, 3):
        for qt in range(2):
            for a in range(2):
                t = 2 * dt + a; src = qacc(dt, qt) + 8 * a
                for j in range(4): e(f"v_pk_mul_f32 {vr(src+2*j,2)}, {vr(src+2*j,2)}, s[{s_c}:{s_c+1}]")
                if t < 4:
                    d = QV + 4 * (2 * t + qt)
                    for j in range(4): e(f"v_cvt_pk_bf16_f32 v{d+j}, v{src+2*j}, v{src+2*j+1}")
                else:
                    d = (224 + 4 * (2 * (t - 4) + qt)) if t < 8 else (192 + 4 * (2 * (t - 8) + qt))
                    for j in range(4): e(f"v_cvt_pk_bf16_f32 v{TMP+j}, v{src+2*j}, v{src+2*j+1}")
                    for j in range(4): e(f"v_accvgpr_write_b32 a{d+j}, v{TMP+j}")
    e("s_nop 1")
    stamp()
    for p in range(12):
        fr = p % NF
        lg.wait(("q0", p))
        for qt in range(2):
            c = "0" if p == 0 else vr(S[0] + 16 * qt, 16)
            e(f"v_mfma_f32_32x32x16_bf16 {vr(S[0]+16*qt,16)}, {vr(FR+4*fr,4)}, {qfrag(p,qt)}, {c}")
            if qt == 0 and p + PD < 12:
                for r in kread((p + PD) % NF, p + PD, 0): e(r); lg.issue(("q0", p + PD))
    for r in adv_krd(0): e(r)
    for p in range(PD):
        for r in kread(p % NF, p, 0): e(r); lg.issue((0, p))
    e("s_nop 15")
    for qt in range(2):
        d = v_t + 1; tmp = v_t + 2
        halfmax(S[0] + 16 * qt, d, tmp)
        for i in range(16):
            e(f"v_sub_f32 v{S[0]+16*qt+i}, v{S[0]+16*qt+i}, v{d}")
            e(f"v_sub_f32 v{NEGM+16*qt+i}, 0, v{d}")
        e(f"v_mov_b32 v{v_l+qt}, 0")
    e("s_nop 7")
    e(f"s_mov_b32 s{s_vrd}, {VBASE + ((20 - 1) % NV) * TILE}")
    VMW0[0] = vmwait([('K', 2), ('W', 20)]) if "nok" not in X else 0
    return lg


def kernel_a_tail(lg):
    iteration(0, True, True, False, (True, True), chk=None, dma=False, vm_wait=6, lg=lg) if False else None
    global dma_v, adv_vm
    sv, sa = dma_v, adv_vm
    dma_v = lambda isw: []; adv_vm = lambda step: []
    iteration(0, True, True, False, (True, True), chk=None, vm_wait=VMW0[0], lg=lg)
    dma_v, adv_vm = sv, sa
    e("s_nop 7")
    stamp()
    e(f"s_mov_b32 s{s_cnt}, 15")
    lab("A_LOOP")
    iteration(1, True, True, True, (True, True), chk="RARE1", lg=lg)
    iteration(0, True, True, True, (True, True), chk="RARE0", lg=lg)
    e(f"s_sub_u32 s{s_cnt}, s{s_cnt}, 1"); e(f"s_cmp_lg_u32 s{s_cnt}, 0"); e("s_cbranch_scc1 A_LOOP")
    stamp()
    e("s_waitcnt lgkmcnt(0)")
    vs = [(s, dt) for s in range(2) for dt in range(6)]
    for p in range(PD):
        for r in vread(p % NF, vs[p][1], vs[p][0], 1): e(r); lg.issue((1, p))
    e(f"v_lshrrev_b32 v{v_pk}, 4, v{v_lane}"); e(f"v_mul_u32_u24 v{v_pk}, 1280, v{v_pk}")
    e(f"v_and_b32 v{v_pk+1}, 15, v{v_lane}"); e(f"v_lshl_add_u32 v{v_pk}, v{v_pk+1}, 4, v{v_pk}")
    e(f"v_lshrrev_b32 v{v_pk+1}, 4, v{v_lane}"); e(f"v_lshlrev_b32 v{v_pk+1}, 11, v{v_pk+1}")
    e(f"v_bfe_u32 v{v_pk+2}, v{v_lane}, 2, 2"); e(f"v_lshl_add_u32 v{v_pk+1}, v{v_pk+2}, 8, v{v_pk+1}")
    e(f"v_and_b32 v{v_pk+2}, 3, v{v_lane}"); e(f"v_lshl_add_u32 v{v_pk+1}, v{v_pk+2}, 3, v{v_pk+1}")
    e(f"v_add_u32 v{v_pk+1}, s{s_pk+2}, v{v_pk+1}"); e(f"v_lshlrev_b32 v{v_pk+2}, 4, v{v_lane}")
    pk = [[f"s_add_u32 m0, s{s_pk+2}, {1024*j}", f"s_add_u32 s{s_xo}, s{s_pk}, {5120*j}",
           f"buffer_load_dwordx4 v{v_pk}, s[{sWO}:{sWO+3}], s{s_xo} offen nt lds"] for j in range(8)]
    iteration(1, False, True, True, (False, True), chk="RARE2", dma=False, vm_wait=0, lg=lg, extra=pk)
    iteration(0, False, False, True, (False, False), dma=False, vm_wait=None, lg=lg)
    stamp()
    e("s_nop 15")
    for qt in range(2):
        e(f"v_mov_b32 v{v_t}, v{v_l+qt}"); e("s_nop 1")
        e(f"v_permlane32_swap_b32 v{v_l+qt}, v{v_t}"); e("s_nop 1")
        e(f"v_add_f32 v{v_l+qt}, v{v_l+qt}, v{v_t}"); e(f"v_rcp_f32 v{v_l+qt}, v{v_l+qt}")
    T0, T1, T2, T3 = 232, 233, 234, 235
    e(f"v_lshrrev_b32 v{T3}, 5, v{v_lane}")
    e(f"v_bfe_u32 v{T0}, v{v_lane}, 4, 1"); e(f"s_lshl_b32 s{s_tmp}, s{s_wave}, 2"); e(f"v_add_u32 v{T0}, s{s_tmp}, v{T0}")
    e(f"s_mov_b32 s{s_tmp2}, 196608"); e(f"v_mul_lo_u32 v{T0}, v{T0}, s{s_tmp2}")
    e(f"v_lshl_add_u32 v{T0}, v{T3}, 8, v{T0}"); e(f"v_and_b32 v{T1}, 15, v{v_lane}"); e(f"v_lshl_add_u32 v{v_oo}, v{T1}, 4, v{T0}")
    e(f"v_add_u32 v{v_oo+1}, {2*196608}, v{v_oo}")
    e(f"s_mul_i32 s{s_tmp}, s{s_b}, {16*196608}"); e(f"s_mul_i32 s{s_tmp2}, s{s_h}, 6144"); e(f"s_add_u32 s{s_tmp}, s{s_tmp}, s{s_tmp2}")
    e(f"s_add_u32 s{s_tmp2}, s{s_tmp}, 4096")
    k = 0
    for dt in range(6):
        for qt in range(2):
            for a in range(2):
                b = 64 + 12 * (k % 8); k += 1
                src = oacc(dt, qt) + 8 * a
                for j in range(8): e(f"v_accvgpr_read_b32 v{b+j}, a{src+j}")
                for j in range(8): e(f"v_mul_f32 v{b+j}, v{b+j}, v{v_l+qt}")
                for j in range(4): e(f"v_cvt_pk_bf16_f32 v{b+8+j}, v{b+2*j}, v{b+2*j+1}")
                off = dt * 1024 + a * 512
                so = s_tmp if off < 4096 else s_tmp2
                e(f"buffer_store_dwordx4 {vr(b+8,4)}, v{v_oo+qt}, s[{sWS}:{sWS+3}], s{so} offen offset:{off%4096}{OST}")
    e("s_cmp_ge_u32 s2, 240"); e("s_cbranch_scc1 A_NOPK")
    e("s_waitcnt vmcnt(24)")
    for f in range(8):
        e(f"ds_read_b64_tr_b16 {vr(160+4*f,2)}, v{v_pk+1} offset:{32*f}"); e(f"ds_read_b64_tr_b16 {vr(162+4*f,2)}, v{v_pk+1} offset:{32*f+1024}")
    for f in range(8):
        e(f"s_waitcnt lgkmcnt({14-2*f})")
        e(f"buffer_store_dwordx4 {vr(160+4*f,4)}, v{v_pk+2}, s[{sWS}:{sWS+3}], s{s_pk+1} offen{OST}")
        if f < 7: e(f"s_add_u32 s{s_pk+1}, s{s_pk+1}, {192*1024}")
    lab("A_NOPK")
    e("s_waitcnt vmcnt(0)") if STAMP else None
    stamp()
    stamp_flush()
    lab("A_END")
    e("s_endpgm")
    rare("RARE1", 1, True); rare("RARE0", 0, True); rare("RARE2", 1, False)

def kernel_pack():
    K = "pack_kernel"
    L.append(f".globl {K}\n.p2align 8\n.type {K},@function"); lab(K)
    e("s_cmp_ge_u32 s2, 240"); e("s_cbranch_scc1 P_END")
    e("s_load_dwordx2 s[4:5], s[0:1], 32"); e("s_load_dwordx2 s[6:7], s[0:1], 56")
    e("v_lshrrev_b32 v1, 6, v0"); e("v_and_b32 v0, 63, v0"); e("s_nop 0"); e("v_readfirstlane_b32 s3, v1")
    e("s_waitcnt lgkmcnt(0)")
    srd(8, 4, 5, 7864320); srd(12, 6, 7, WS_BYTES)
    e("s_lshl_b32 s16, s2, 2"); e("s_add_u32 s16, s16, s3")
    e("s_mul_hi_u32 s17, s16, 0x33333334")
    e("s_mul_i32 s18, s17, 5"); e("s_sub_u32 s18, s16, s18")
    e("v_lshrrev_b32 v1, 4, v0"); e("v_mul_u32_u24 v1, 10240, v1"); e("v_and_b32 v2, 15, v0"); e("v_lshl_add_u32 v1, v2, 1, v1")
    e("s_mul_i32 s19, s17, 40960"); e("s_lshl_b32 s20, s18, 8"); e("s_add_u32 s19, s19, s20")
    for j in range(8): e(f"v_add_u32 v{2+j}, {1280*j}, v1")
    for i in range(8):
        for j in range(8):
            e(f"buffer_load_ushort v{64+8*i+j}, v{2+j}, s[8:11], s19 offen offset:{32*i}")
        if i == 6: e("s_waitcnt vmcnt(40)")
    e("v_lshlrev_b32 v1, 4, v0")
    e("s_mul_i32 s20, s18, %d" % (8 * 192 * 1024)); e("s_lshl_b32 s21, s17, 10"); e("s_add_u32 s20, s20, s21"); e(f"s_add_u32 s20, s20, {WS_WO}")
    e("s_waitcnt vmcnt(0)")
    for i in range(8):
        for j in range(4): e(f"v_lshl_or_b32 v{16+4*i+j}, v{64+8*i+2*j+1}, 16, v{64+8*i+2*j}")
    for i in range(8):
        e(f"buffer_store_dwordx4 {vr(16+4*i,4)}, v1, s[12:15], s20 offen")
        e(f"s_add_u32 s20, s20, {192*1024}")
    lab("P_END"); e("s_endpgm")

def kernel_b():
    K = "oproj_kernel"
    L.append(f".globl {K}\n.p2align 8\n.type {K},@function"); lab(K)
    OT = OPT.get("otest") == "1"; KS = 24 if OT else 48
    e(f"s_cmp_ge_u32 s2, {512 if OT else 256}"); e("s_cbranch_scc1 B_END")
    if OT: e("s_lshr_b32 s30, s2, 8"); e("s_and_b32 s2, s2, 255"); e("s_mul_i32 s30, s30, 24576")
    e("s_load_dwordx2 s[4:5], s[0:1], 40"); e("s_load_dwordx2 s[6:7], s[0:1], 56")
    e("v_lshrrev_b32 v1, 6, v0"); e("v_and_b32 v0, 63, v0"); e("s_nop 0"); e("v_readfirstlane_b32 s3, v1")
    e("s_waitcnt lgkmcnt(0)")
    if STAMP: e("s_memrealtime s[40:41]"); e("s_memtime s[44:45]")
    srd(8, 4, 5, 2621440); srd(12, 6, 7, WS_BYTES)
    e("s_and_b32 s16, s2, 7"); e("s_lshr_b32 s17, s2, 3"); e("s_and_b32 s18, s17, 3"); e("s_lshl_b32 s16, s16, 2"); e("s_add_u32 s16, s16, s18")
    e("s_lshr_b32 s17, s17, 2")
    if OPT.get("omap") == "1":
        e("s_and_b32 s16, s2, 7"); e("s_lshr_b32 s17, s2, 3")
        e("s_lshr_b32 s18, s16, 1"); e("s_lshl_b32 s18, s18, 3"); e("s_and_b32 s19, s17, 7"); e("s_add_u32 s18, s18, s19")
        e("s_and_b32 s16, s16, 1"); e("s_lshl_b32 s16, s16, 2"); e("s_lshr_b32 s17, s17, 3"); e("s_add_u32 s17, s17, s16")
        e("s_mov_b32 s16, s18")
    if OPT.get("omap") == "2":
        e("s_lshr_b32 s16, s2, 3"); e("s_and_b32 s17, s2, 7")
    e("s_mul_i32 s20, s16, %d" % (4 * 196608)); e("s_mul_i32 s22, s3, %d" % (48 * 1024)); e("s_add_u32 s20, s20, s22")
    if OT: e("s_add_u32 s22, s22, s30"); e("s_add_u32 s20, s20, s30")
    e("s_mul_i32 s21, s17, %d" % (5 * 196608)); e("s_add_u32 s21, s21, s22"); e(f"s_add_u32 s21, s21, {WS_WO}")
    if "osameO" in X: e("s_mov_b32 s20, s22")
    if "osameW" in X: e(f"s_add_u32 s21, s22, {WS_WO}")
    e("v_lshlrev_b32 v1, 4, v0")
    for i in range(1, 5): e(f"v_add_u32 v{1+i}, {196608*i}, v1")
    ACC = 16; FRB = 96; D = int(OPT.get("od", "4")); LA = D - 1
    def slot(k, o, n):
        j = k % D
        return vr(FRB + 36 * j + o, n) if j < 4 else ar(36 * (j - 4) + o, n)
    def loads(k):
        r = [f"buffer_load_dwordx4 {slot(k,4*i,4)}, v{1+i}, s[12:15], s20 offen" for i in range(4)]
        r += [f"buffer_load_dwordx4 {slot(k,16+4*i,4)}, v{1+i}, s[12:15], s21 offen" for i in range(5)]
        if "oldsdma" in X:
            r = [f"buffer_load_dwordx4 v{1+i}, s[12:15], s20 offen offset:{0} lds" for i in range(4)]
            r += [f"buffer_load_dwordx4 v{1+i}, s[12:15], s21 offen offset:{0} lds" for i in range(5)]
        r += ["s_add_u32 s20, s20, 1024", "s_add_u32 s21, s21, 1024"]
        return r
    def mf(k, first):
        r = []
        for n in range(5):
            for m in range(4):
                acc = vr(ACC + 4 * (5 * m + n), 4)
                r.append(f"v_mfma_f32_16x16x32_bf16 {acc}, {slot(k,16+4*n,4)}, {slot(k,4*m,4)}, {'0' if first else acc}")
        return r
    if "oldsdma" in X: e("s_lshl_b32 s24, s3, 12"); e("s_mov_b32 m0, s24")
    for k in range(LA):
        for r in loads(k): e(r)
    def group(k0, first, last):
        for k in range(k0, k0 + D):
            have = (not last) or (k + LA < KS)
            nl = loads(k + LA) if have else []
            outst = (LA - 1) if have else (KS - 1 - k)
            e(f"s_waitcnt vmcnt({9 * outst})")
            ms = mf(k, first and k == k0)
            for i, m in enumerate(ms):
                e(m)
                if i % 2 == 1 and nl: e(nl.pop(0))
            while nl: e(nl.pop(0))
    NG = KS // D
    group(0, True, False)
    e(f"s_mov_b32 s23, {NG - 2}")
    lab("B_LOOP")
    group(D, False, False)
    e("s_sub_u32 s23, s23, 1"); e("s_cmp_lg_u32 s23, 0"); e("s_cbranch_scc1 B_LOOP")
    group(KS - D, False, True)
    e("s_nop 15")
    e("s_mul_i32 s24, s3, 20480"); e("v_lshlrev_b32 v6, 4, v0"); e("v_add_u32 v7, s24, v6")
    for t in range(20): e(f"ds_write_b128 v7, {vr(ACC+4*t,4)} offset:{1024*t}")
    e("s_waitcnt lgkmcnt(0)"); e("s_barrier")
    e("s_mul_i32 s24, s3, 5120"); e("v_add_u32 v7, s24, v6"); e("v_add_u32 v8, 40960, v7")
    for n in range(5):
        for w in range(4):
            e(f"ds_read_b128 {vr(FRB+16*n+4*w,4)}, v{7 + (w//2)} offset:{20480*(w%2)+1024*n}")
    e("s_lshl_b32 s24, s16, 6"); e("s_lshl_b32 s25, s3, 4"); e("s_add_u32 s24, s24, s25")
    e("v_and_b32 v9, 15, v0"); e("v_add_u32 v9, s24, v9"); e("v_mul_u32_u24 v9, 1280, v9")
    e("v_lshrrev_b32 v10, 4, v0"); e("v_lshl_add_u32 v9, v10, 3, v9"); e("s_mul_i32 s25, s17, 160")
    for n in range(5):
        e(f"s_waitcnt lgkmcnt({min(15, 4*(4-n))})")
        b = FRB + 16 * n
        for j in range(4):
            e(f"v_add_f32 v{b+j}, v{b+j}, v{b+4+j}"); e(f"v_add_f32 v{b+8+j}, v{b+8+j}, v{b+12+j}")
        for j in range(4): e(f"v_add_f32 v{b+j}, v{b+j}, v{b+8+j}")
        e(f"v_cvt_pk_bf16_f32 v{b+4}, v{b}, v{b+1}"); e(f"v_cvt_pk_bf16_f32 v{b+5}, v{b+2}, v{b+3}")
        e(f"buffer_store_dwordx2 {vr(b+4,2)}, v9, s[8:11], s25 offen offset:{32*n}")
    if STAMP:
        e("s_waitcnt vmcnt(0)"); e("s_memrealtime s[42:43]"); e("s_memtime s[46:47]"); e("s_waitcnt lgkmcnt(0)")
        e("s_cmp_lg_u32 s3, 0"); e("s_cbranch_scc1 B_END")
        e("s_lshl_b32 s24, s2, 4"); e("s_add_u32 s24, s24, 0x4800000"); e("v_mov_b32 v1, s24")
        e("s_sub_u32 s46, s46, s44")
        for i, r in enumerate((40, 42, 46)):
            e(f"v_mov_b32 v2, s{r}"); e(f"buffer_store_dword v2, v1, s[12:15], 0 offen offset:{4*i}")
    lab("B_END"); e("s_endpgm")

def desc(name, vg, acc, sg=102):
    L.append(f""".p2align 6
.amdhsa_kernel {name}
  .amdhsa_next_free_vgpr {vg}
  .amdhsa_next_free_sgpr {sg}
  .amdhsa_accum_offset {acc}
  .amdhsa_group_segment_fixed_size 0
  .amdhsa_kernarg_size 64
  .amdhsa_user_sgpr_count 2
  .amdhsa_user_sgpr_kernarg_segment_ptr 1
  .amdhsa_system_sgpr_workgroup_id_x 1
.end_amdhsa_kernel""")

hdr = open("standalone__mha_block_cached__near_ridge.s.ref").read().split("\n")
hdr = [h for h in hdr if h.startswith(";") and "@launch" not in h and "Override" not in h and "grid=ceil" not in h]
L += hdr
L.append(f"; @launch kernel=attn_kernel grid=(256,1,1) block=(256,1,1) lds={LDS_A}")
L.append("; @launch kernel=oproj_kernel grid=(%d,1,1) block=(256,1,1) lds=81920" % (512 if OPT.get("otest") == "1" else 256))
L.append('.amdgcn_target "amdgcn-amd-amdhsa--gfx950"\n.text')
lg = kernel_a(); kernel_a_tail(lg)
kernel_b()
L.append('.section .rodata,"a"')
desc("attn_kernel", 512, 256, 102); desc("oproj_kernel", 256 if OPT.get("otest") == "1" else 512, 256, 48)
open(OUT, "w").write("\n".join(L) + "\n")
print("wrote", OUT, len(L), "lines")
```

```python
import sys, math
OUT = sys.argv[1] if len(sys.argv) > 1 else "standalone__mha_block_cached__near_ridge.s"
OPT = dict(a.split("=") for a in sys.argv[2:])
L = []
X = set(OPT.get("x", "").split(","))
def e(s):
    if "nodma" in X and s.endswith("lds"): return
    if "noxdma" in X and s.endswith("lds") and f"s[{sX}:{sX+3}]" in s: return
    if "nowdma" in X and s.endswith("lds") and f"s[{sW}:{sW+3}]" in s: return
    if "noxrd" in X and s.startswith("ds_read_b128 a["): return
    if "nolds" in X and s.startswith("ds_read"): return
    if "nosm" in X and (s.startswith("v_exp") or s.startswith("v_cvt_pk") or s.startswith("v_add_f32")): return
    if "nobar" in X and s.startswith("s_barrier"): return
    if "nomfma" in X and s.startswith("v_mfma"): return
    if "nox" in X and s.startswith("buffer_load_dwordx4 a["): return
    if "norare" in X and s.startswith("s_cbranch_vccnz"): return
    if "novm" in X and s.startswith("s_waitcnt vmcnt"): return
    if "notr" in X and s.startswith("ds_read_b64_tr"): return
    L.append("  " + s)
def lab(s): L.append(s + ":")
def vr(a, n): return f"v[{a}:{a+n-1}]"
def ar(a, n): return f"a[{a}:{a+n-1}]"

TILE = 12288
NK = 6; NV = 6
KBASE = 0; VBASE = NK * TILE
LDS_A = 163840
WS_O = 0; WS_WO = 25165824; WS_BYTES = 402653184
CSCALE = (192 ** -0.5) * math.log2(math.e)
import struct
def f32(x): return "0x%08x" % struct.unpack("<I", struct.pack("<f", x))[0]
THR = 65536.0
PST = ' ' + OPT.get('pst', 'sc0+sc1').replace('+', ' ')
OS4 = OPT.get('os4', '0') == '1'
PKL = OPT.get('pkl', '1') == '1'
OST = ' ' + OPT.get('ost', 'sc0+sc1').replace('+', ' ')
NT_KV = OPT.get("nt", "1") == "1"

sX, sK, sV, sW, sWS = 8, 12, 16, 20, 24
s_wave, s_b, s_h = 28, 29, 30
s_kd, s_vd = 31, 32
s_km, s_vm = 33, 34
s_krd, s_vrd = 35, 36
s_cnt, s_thr, s_tmp, s_tmp2 = 37, 38, 39, 44
s_c = 40
s_xo = 42
s_w3 = 43
s_kend, s_vend = 45, 46
s_xb = 58
sWO = 92
sPW = 48
s_pk = 98
v_lane = 0
v_kd = 1
v_vd = 4
v_wd = 7
v_kb = 10
v_vb = 14
v_ka = [16, 22]
v_xo = 28
v_ps = 30
FR = 32
NF = 6
TMP = 56
S = [64, 96]
P = [128, 144]
NEGM = 160
QV = 192
v_l = 224
v_p = 226
v_t = 228
v_oo = 240
v_pk = 242
def qfrag(t, qt):
    if t < 4: return vr(QV + 4 * (2 * t + qt), 4)
    if t < 8: return ar(224 + 4 * (2 * (t - 4) + qt), 4)
    return ar(192 + 4 * (2 * (t - 8) + qt), 4)
def oacc(dt, qt): return 16 * (2 * dt + qt)
def qacc(dt, qt): return 64 + 16 * (2 * dt + qt)

def srd(d, lo, hi, nrec):
    e(f"s_mov_b32 s{d}, s{lo}"); e(f"s_and_b32 s{d+1}, s{hi}, 0xffff")
    e(f"s_mov_b32 s{d+2}, {nrec}"); e(f"s_mov_b32 s{d+3}, 0x20000")

STAMP = OPT.get("stamp", "0") == "1"
stamp_n = [0]
def stamp():
    if not STAMP: return
    i = stamp_n[0]; stamp_n[0] += 1
    e(f"s_memtime s[{60+2*i}:{61+2*i}]")
    e("s_waitcnt lgkmcnt(0)") if False else None
def stamp_flush():
    if not STAMP: return
    e("s_memrealtime s[90:91]"); e("s_waitcnt lgkmcnt(0)")
    e(f"s_cmp_lg_u32 s{s_wave}, 0"); e("s_cbranch_scc1 ST_SKIP")
    e("s_lshl_b32 s6, s2, 6"); e("s_add_u32 s6, s6, 0x4000000")
    e("v_mov_b32 v1, s6")
    for i in range(stamp_n[0]):
        e(f"s_sub_u32 s6, s{60+2*i}, s60"); e("v_mov_b32 v2, s6")
        e(f"buffer_store_dword v2, v1, s[{sWS}:{sWS+3}], 0 offen offset:{4*i}")
    e("v_mov_b32 v2, s88"); e(f"buffer_store_dword v2, v1, s[{sWS}:{sWS+3}], 0 offen offset:56")
    e("v_mov_b32 v2, s90"); e(f"buffer_store_dword v2, v1, s[{sWS}:{sWS+3}], 0 offen offset:60")
    lab("ST_SKIP")

class LG:
    def __init__(s): s.n = 0; s.tag = {}
    def issue(s, tag=None):
        s.n += 1
        if tag is not None: s.tag[tag] = s.n
    def wait(s, tag):
        k = s.n - s.tag[tag]
        e(f"s_waitcnt lgkmcnt({min(k,15)})")

def kread(fr, t, par):
    return [f"ds_read_b128 {vr(FR+4*fr,4)}, v{v_ka[par]+(t%4)} offset:{128*(t//4)}"]
def vread(fr, dt, s, par):
    a = v_ka[par] + 4 + (dt & 1)
    o = 128 * (dt >> 1) + 384 * 16 * s
    return [f"ds_read_b64_tr_b16 {vr(FR+4*fr,2)}, v{a} offset:{o}",
            f"ds_read_b64_tr_b16 {vr(FR+4*fr+2,2)}, v{a} offset:{o+384*4}"]

def ring_adv(s, n_slots, base):
    return [f"s_add_u32 s{s}, s{s}, {TILE}", f"s_cmp_ge_u32 s{s}, s{n_slots}", f"s_cselect_b32 s{s}, s{base}, s{s}"]

def dma_k():
    nt = " nt" if NT_KV else ""
    r = [[f"s_mov_b32 m0, s{s_km}", "s_nop 0", f"buffer_load_dwordx4 v{v_kd}, s[{sK}:{sK+3}], s{s_kd} offen{nt} lds"]]
    for i in (1, 2): r.append([f"buffer_load_dwordx4 v{v_kd+i}, s[{sK}:{sK+3}], s{s_kd} offen offset:{1024*i}{nt} lds"])
    return r
def dma_v(isw):
    nt = " nt" if (NT_KV and not isw) else ""
    srd_, vo = (sW, v_wd) if isw else (sV, v_vd)
    r = [[f"s_mov_b32 m0, s{s_vm}", "s_nop 0", f"buffer_load_dwordx4 v{vo}, s[{srd_}:{srd_+3}], s{s_vd} offen{nt} lds"]]
    for i in (1, 2): r.append([f"buffer_load_dwordx4 v{vo+i}, s[{srd_}:{srd_+3}], s{s_vd} offen offset:{1024*i}{nt} lds"])
    return r
def adv_km(): return [f"s_add_u32 s{s_kd}, s{s_kd}, {TILE}", f"s_add_u32 s{s_km}, s{s_km}, {TILE}",
                      f"s_cmp_ge_u32 s{s_km}, s{s_kend}", f"s_cselect_b32 s{s_tmp}, {NK*TILE}, 0", f"s_sub_u32 s{s_km}, s{s_km}, s{s_tmp}"]
def adv_vm(step): return [f"s_add_u32 s{s_vd}, s{s_vd}, {step}", f"s_add_u32 s{s_vm}, s{s_vm}, {TILE}",
                      f"s_cmp_ge_u32 s{s_vm}, s{s_vend}", f"s_cselect_b32 s{s_tmp}, {NV*TILE}, 0", f"s_sub_u32 s{s_vm}, s{s_vm}, s{s_tmp}"]
def adv_krd(par):
    r = [f"s_add_u32 s{s_krd}, s{s_krd}, {TILE}", f"s_cmp_ge_u32 s{s_krd}, {KBASE+NK*TILE}",
         f"s_cselect_b32 s{s_krd}, {KBASE}, s{s_krd}"]
    r += [f"v_add_u32 v{v_ka[par]+i}, s{s_krd}, v{v_kb+i}" for i in range(4)]
    return r
def adv_vrd(par):
    r = [f"s_add_u32 s{s_vrd}, s{s_vrd}, {TILE}", f"s_cmp_ge_u32 s{s_vrd}, {VBASE+NV*TILE}",
         f"s_cselect_b32 s{s_vrd}, {VBASE}, s{s_vrd}"]
    r += [f"v_add_u32 v{v_ka[par]+4+i}, s{s_vrd}, v{v_vb+i}" for i in range(2)]
    return r

def sm_ops(Sc, Pc):
    ops = []; pend = None; first = [True, True]
    idx = 0
    for qt in range(2):
        for pr in range(8):
            ta = TMP + 2 * (idx % 4); tb = ta + 1; idx += 1
            r = Sc + 16 * qt + 2 * pr
            ops.append((2, f"v_exp_f32 v{ta}, v{r}")); ops.append((2, f"v_exp_f32 v{tb}, v{r+1}"))
            if pend: ops += pend
            if first[qt]:
                pend = [(1, f"v_add_f32 v{v_p+qt}, v{ta}, v{tb}")]; first[qt] = False
            else:
                pend = [(1, f"v_add_f32 v{v_p+qt}, v{v_p+qt}, v{ta}"), (1, f"v_add_f32 v{v_p+qt}, v{v_p+qt}, v{tb}")]
            pend.append((1, f"v_cvt_pk_bf16_f32 v{Pc+8*qt+pr}, v{ta}, v{tb}"))
    ops.append((1, "s_nop 0")); ops += pend
    return ops

def halfmax(src16, dst, tmp):
    e(f"v_max3_f32 v{dst}, v{src16}, v{src16+1}, v{src16+2}")
    for i in range(3, 15, 2): e(f"v_max3_f32 v{dst}, v{dst}, v{src16+i}, v{src16+i+1}")
    e(f"v_max_f32 v{dst}, v{dst}, v{src16+15}")
    e(f"v_mov_b32 v{tmp}, v{dst}"); e("s_nop 1")
    e(f"v_permlane32_swap_b32 v{dst}, v{tmp}"); e("s_nop 1")
    e(f"v_max_f32 v{dst}, v{dst}, v{tmp}")

PD = 3
VMW0 = [0]
def iteration(par, do_qk, do_sm, do_pv, nxt, first_c_negm=True, chk=None, dma=True, vm_wait=18, lg=None, extra=None):
    Sc, Sn, Pc, Pp = S[par], S[1-par], P[par], P[1-par]
    def pairs(dq, dp):
        ks = [("K", t) for t in range(12)] if dq else []
        vs = [("V", (s, dt)) for s in range(2) for dt in range(6)] if dp else []
        if dq and dp:
            o = [ks[0]]
            for i in range(1, 12): o += [ks[i], vs[i-1]]
            o += [vs[11]]
            return o
        return ks + vs
    pl = pairs(do_qk, do_pv)
    npl = pairs(*nxt)
    n = len(pl)
    def rd(item, fr, pr_):
        return kread(fr, item[1], pr_) if item[0] == "K" else vread(fr, item[1][1], item[1][0], pr_)
    q = sm_ops(Sc, Pc) if do_sm else []
    tot = sum(c for c, _ in q)
    nslots = 2 * n
    misc = {}
    def put(slot, grp): misc.setdefault(slot, []).append(grp)
    bslot = 3
    if vm_wait is not None: put(bslot, [f"s_waitcnt vmcnt({vm_wait})", "s_barrier"])
    if dma:
        d = dma_k() + [adv_km()] + dma_v(False) + [adv_vm(TILE)]
        step = max(1, (nslots - bslot - 8) // len(d))
        for i, g in enumerate(d): put(min(bslot + 1 + i * step, nslots - 1), g)
    if isinstance(extra, dict):
        for sl_, g in extra.items(): put(sl_, g)
    elif extra:
        for i, g in enumerate(extra): put(min(bslot + 1 + 2 * i, nslots - 1), g)
    aslot = max(bslot + 1, nslots - 2 * PD - 4)
    if nxt[0]: put(aslot - 2 if aslot - 2 > 0 else 0, adv_krd(1 - par))
    if nxt[1]: put(aslot, adv_vrd(1 - par))
    done = 0; qi = 0
    for p in range(n):
        item = pl[p]; fr = p % NF
        for half in range(2):
            slot = 2 * p + half
            if half == 0: lg.wait((par, p))
            qt = half
            if item[0] == "K":
                t = item[1]
                c = (vr(NEGM + 16 * qt, 16) if first_c_negm else "0") if t == 0 else vr(Sn + 16 * qt, 16)
                e(f"v_mfma_f32_32x32x16_bf16 {vr(Sn+16*qt,16)}, {vr(FR+4*fr,4)}, {qfrag(t,qt)}, {c}")
            else:
                s, dt = item[1]
                o = ar(oacc(dt, qt), 16)
                e(f"v_mfma_f32_32x32x16_bf16 {o}, {vr(FR+4*fr,4)}, {vr(Pp+8*qt+4*s,4)}, {o}")
            if half == 0:
                pp = p + PD
                if pp < n: rr, tg = rd(pl[pp], pp % NF, par), (par, pp)
                elif pp - n < len(npl) and npl: rr, tg = rd(npl[pp - n], (pp - n) % NF, 1 - par), (1 - par, pp - n)
                else: rr = []
                for r in rr: e(r); lg.issue(tg)
            for g in misc.get(slot, []):
                for r in g: e(r)
            lim = tot * (slot + 1) / max(1, nslots - 3)
            while qi < len(q) and done < lim:
                e(q[qi][1]); done += q[qi][0]; qi += 1
    while qi < len(q): e(q[qi][1]); qi += 1
    assert n % NF == 0
    if do_sm:
        if chk:
            e(f"v_max_f32 v{v_t}, v{v_p}, v{v_p+1}")
            e(f"v_cmp_lt_f32 vcc, s{s_thr}, v{v_t}")
            e(f"s_cbranch_vccnz {chk}")
            lab(chk + "_ret")
        e(f"v_add_f32 v{v_l}, v{v_l}, v{v_p}"); e(f"v_add_f32 v{v_l+1}, v{v_l+1}, v{v_p+1}")

def rare(name, par, has_next):
    Sc, Sn, Pc = S[par], S[1-par], P[par]
    lab(name)
    e("s_nop 15"); e("s_nop 15")
    for qt in range(2):
        d = v_t + 1; tmp = v_t + 2; al = v_t + 3
        halfmax(Sc + 16 * qt, d, tmp)
        e(f"v_max_f32 v{d}, 0, v{d}")
        e(f"v_sub_f32 v{al}, 0, v{d}"); e(f"v_exp_f32 v{al}, v{al}"); e("s_nop 1")
        for i in range(16):
            e(f"v_sub_f32 v{Sc+16*qt+i}, v{Sc+16*qt+i}, v{d}")
            if has_next: e(f"v_sub_f32 v{Sn+16*qt+i}, v{Sn+16*qt+i}, v{d}")
            e(f"v_sub_f32 v{NEGM+16*qt+i}, v{NEGM+16*qt+i}, v{d}")
        e(f"v_mul_f32 v{v_l+qt}, v{v_l+qt}, v{al}")
        for dt in range(6):
            for i in range(16):
                a = oacc(dt, qt) + i
                e(f"v_accvgpr_read_b32 v{tmp}, a{a}"); e(f"v_mul_f32 v{tmp}, v{tmp}, v{al}"); e(f"v_accvgpr_write_b32 a{a}, v{tmp}")
    for _, t in sm_ops(Sc, Pc): e(t)
    e("s_nop 7")
    e(f"s_branch {name}_ret")

def kernel_a():
    K = "attn_kernel"
    L.append(f".globl {K}\n.p2align 8\n.type {K},@function"); lab(K)
    e("s_cmp_ge_u32 s2, 256"); e("s_cbranch_scc1 A_END")
    e("s_load_dwordx8 s[48:55], s[0:1], 0")
    e("s_load_dwordx2 s[56:57], s[0:1], 56")
    e("s_load_dwordx2 s[96:97], s[0:1], 32")
    e(f"v_lshrrev_b32 v1, 6, v0"); e(f"v_and_b32 v{v_lane}, 63, v0"); e("s_nop 0")
    e(f"v_readfirstlane_b32 s{s_wave}, v1")
    e(f"s_lshr_b32 s{s_b}, s2, 5"); e(f"s_and_b32 s{s_h}, s2, 31")
    stamp()
    if STAMP: e("s_memrealtime s[88:89]")
    e(f"s_mul_i32 s{s_w3}, s{s_wave}, 3072")
    T0, T1, T2, T3 = 228, 229, 230, 231
    e(f"s_mov_b32 s{s_tmp2}, 0xaaab")
    for i in range(3):
        e(f"s_mul_i32 s{s_tmp}, s{s_wave}, 192"); e(f"s_add_u32 s{s_tmp}, s{s_tmp}, {64*i}")
        e(f"v_add_u32 v{T0}, s{s_tmp}, v{v_lane}")
        e(f"v_mul_lo_u32 v{T1}, v{T0}, s{s_tmp2}"); e(f"v_lshrrev_b32 v{T1}, 20, v{T1}")
        e(f"v_mul_u32_u24 v{T2}, 24, v{T1}"); e(f"v_sub_u32 v{T2}, v{T0}, v{T2}")
        e(f"v_bfe_u32 v{T3}, v{T1}, 1, 3"); e(f"v_xor_b32 v{T3}, v{T2}, v{T3}"); e(f"v_lshlrev_b32 v{T3}, 4, v{T3}")
        if "noswzk" in X: e(f"v_lshlrev_b32 v{T3}, 4, v{T2}")
        e(f"v_mul_u32_u24 v{v_kd+i}, 384, v{T1}"); e(f"v_add_u32 v{v_kd+i}, v{v_kd+i}, v{T3}")
        e(f"v_bfe_u32 v{T3}, v{T1}, 1, 1"); e(f"v_lshlrev_b32 v{T3}, 2, v{T3}"); e(f"v_xor_b32 v{T3}, v{T2}, v{T3}"); e(f"v_lshlrev_b32 v{T3}, 4, v{T3}")
        if "noswzv" in X: e(f"v_lshlrev_b32 v{T3}, 4, v{T2}")
        e(f"v_mul_u32_u24 v{v_vd+i}, 384, v{T1}"); e(f"v_add_u32 v{v_vd+i}, v{v_vd+i}, v{T3}")
        e(f"v_mul_u32_u24 v{v_wd+i}, 12288, v{T1}"); e(f"v_add_u32 v{v_wd+i}, v{v_wd+i}, v{T3}")
        if i:
            for b in (v_kd, v_vd, v_wd): e(f"v_subrev_u32 v{b+i}, {1024*i}, v{b+i}")
    e(f"v_and_b32 v{T0}, 31, v{v_lane}")
    e(f"v_and_b32 v{T1}, 19, v{T0}")
    e(f"v_bfe_u32 v{T2}, v{T0}, 2, 1"); e(f"v_lshlrev_b32 v{T2}, 3, v{T2}"); e(f"v_or_b32 v{T1}, v{T1}, v{T2}")
    e(f"v_bfe_u32 v{T2}, v{T0}, 3, 1"); e(f"v_lshlrev_b32 v{T2}, 2, v{T2}"); e(f"v_or_b32 v{T1}, v{T1}, v{T2}")
    e(f"v_bfe_u32 v{T2}, v{T1}, 1, 3")
    e(f"v_lshrrev_b32 v{T3}, 5, v{v_lane}")
    e(f"v_xor_b32 v{T2}, v{T2}, v{T3}")
    e(f"v_mul_u32_u24 v{T1}, 384, v{T1}")
    for tt in range(4):
        e(f"v_xor_b32 v{T0}, {2*tt}, v{T2}"); e(f"v_lshlrev_b32 v{T0}, 4, v{T0}"); e(f"v_add_u32 v{v_kb+tt}, v{T1}, v{T0}")
    e(f"v_bfe_u32 v{T0}, v{v_lane}, 2, 2")
    e(f"v_lshl_add_u32 v{T1}, v{T3}, 3, v{T0}")
    e(f"v_mul_u32_u24 v{T1}, 384, v{T1}")
    e(f"v_bfe_u32 v{T2}, v{v_lane}, 4, 1"); e(f"v_lshl_add_u32 v{T1}, v{T2}, 5, v{T1}")
    e(f"v_and_b32 v{T2}, 1, v{v_lane}"); e(f"v_lshl_add_u32 v{T1}, v{T2}, 4, v{T1}")
    e(f"v_bfe_u32 v{T2}, v{v_lane}, 1, 1"); e(f"v_lshl_add_u32 v{T1}, v{T2}, 3, v{T1}")
    e(f"v_bfe_u32 v{T2}, v{v_lane}, 3, 1")
    e(f"v_lshl_add_u32 v{v_vb}, v{T2}, 6, v{T1}")
    e(f"v_xor_b32 v{T2}, 1, v{T2}"); e(f"v_lshl_add_u32 v{v_vb+1}, v{T2}, 6, v{T1}")
    e(f"v_lshrrev_b32 v{T0}, 3, v{v_lane}"); e(f"s_lshl_b32 s{s_tmp}, s{s_wave}, 6"); e(f"v_add_u32 v{T0}, s{s_tmp}, v{T0}")
    e(f"v_mul_u32_u24 v{T0}, 1280, v{T0}")
    e(f"v_lshrrev_b32 v{T1}, 4, v{v_lane}"); e(f"v_and_b32 v{T2}, 7, v{v_lane}")
    if "noswzx" not in X: e(f"v_xor_b32 v{T2}, v{T2}, v{T1}")
    e(f"v_lshl_add_u32 v{v_xo}, v{T2}, 4, v{T0}")
    if "noswzx" not in X: e(f"v_xor_b32 v{T2}, 4, v{T2}")
    e(f"v_lshl_add_u32 v{v_xo+1}, v{T2}, 4, v{T0}"); e(f"v_add_u32 v{v_xo+1}, {8*1280-1024}, v{v_xo+1}")
    e(f"s_lshl_b32 s{s_tmp}, s{s_wave}, 13"); e(f"s_add_u32 s{s_xb}, s{s_tmp}, 24576")
    e(f"s_mov_b32 s{s_tmp2}, 57344"); e(f"s_cmp_lt_u32 s{s_wave}, 2"); e(f"s_cselect_b32 s{s_tmp2}, s{s_tmp2}, {147456-16384}"); e(f"s_add_u32 s{s_xb+1}, s{s_tmp}, s{s_tmp2}")
    e(f"v_and_b32 v{T0}, 31, v{v_lane}"); e(f"v_bfe_u32 v{T1}, v{T0}, 1, 3"); e(f"v_xor_b32 v{T1}, v{T1}, v{T3}"); e(f"v_lshlrev_b32 v{T0}, 7, v{T0}")
    for j in range(4):
        e(f"v_xor_b32 v{T2}, {2*j}, v{T1}"); e(f"v_lshl_add_u32 v{T2}, v{T2}, 4, v{T0}")
        e(f"v_add_u32 v{TMP+j}, s{s_xb}, v{T2}"); e(f"v_add_u32 v{TMP+4+j}, s{s_xb+1}, v{T2}")
    e(f"s_mov_b32 s{s_kd}, 0"); e(f"s_mov_b32 s{s_vd}, 0")
    e(f"s_add_u32 s{s_km}, s{s_w3}, {KBASE}"); e(f"s_add_u32 s{s_vm}, s{s_w3}, {VBASE}")
    e(f"s_add_u32 s{s_kend}, s{s_km}, {NK*TILE}"); e(f"s_add_u32 s{s_vend}, s{s_vm}, {NV*TILE}")
    e("s_waitcnt lgkmcnt(0)")
    if "qsame" in X: e(f"s_mov_b32 s{s_b}, 0"); e(f"s_mov_b32 s{s_h}, 0")
    e(f"s_mul_i32 s{s_tmp}, s{s_b}, 327680"); e(f"s_add_u32 s48, s48, s{s_tmp}"); e("s_addc_u32 s49, s49, 0")
    e(f"s_mul_i32 s{s_tmp}, s2, 393216")
    e(f"s_add_u32 s50, s50, s{s_tmp}"); e("s_addc_u32 s51, s51, 0"); e(f"s_add_u32 s52, s52, s{s_tmp}"); e("s_addc_u32 s53, s53, 0")
    e(f"s_mul_i32 s{s_tmp}, s{s_h}, 384"); e(f"s_add_u32 s54, s54, s{s_tmp}"); e("s_addc_u32 s55, s55, 0")
    srd(sX, 48, 49, 327680);
    srd(sW, 54, 55, 0); e(f"s_sub_u32 s{sW+2}, 7864320, s{s_tmp}")
    WSTEP = 32 * 12288
    def xdma(n):
        g = []
        for k2 in range(4):
            g.append([f"s_add_u32 m0, s{s_xb+(n%2)}, {2048*k2}", f"s_mov_b32 s{s_xo}, {128*n+20480*k2}",
                      f"buffer_load_dwordx4 v{v_xo}, s[{sX}:{sX+3}], s{s_xo} offen lds",
                      f"buffer_load_dwordx4 v{v_xo+1}, s[{sX}:{sX+3}], s{s_xo} offen offset:1024 lds"])
        return g
    def xread(n):
        return [f"ds_read_b128 {ar(192+32*(n%2)+16*ip+4*(2*s+qt),4)}, v{TMP+4*(n%2)+2*ip+s} offset:{4096*qt}"
                for ip in range(2) for s in range(2) for qt in range(2)]
    vm = []
    def emit_groups(gs):
        for g in gs:
            for r in g: e(r)
    def wtile(isw, st): return dma_v(isw) + [adv_vm(WSTEP if st < 19 else TILE) if st != 19 else adv_vm(0) + [f"s_mov_b32 s{s_vd}, 0"]]
    emit_groups(wtile(True, 0)); vm += [("W", 0)] * 3
    emit_groups(xdma(0)); vm += [("x", 0)] * 8
    emit_groups(wtile(True, 1)); vm += [("W", 1)] * 3
    srd(sK, 50, 51, 393216); srd(sV, 52, 53, 393216)
    srd(sWS, 56, 57, WS_BYTES)
    srd(sWO, 96, 97, 7864320)
    e("s_cmp_ge_u32 s2, 240"); e(f"s_cselect_b32 s{sWO+2}, 0, s{sWO+2}")
    e(f"s_lshl_b32 s{s_tmp}, s2, 2"); e(f"s_add_u32 s{s_tmp}, s{s_tmp}, s{s_wave}")
    e(f"s_mul_hi_u32 s{s_tmp2}, s{s_tmp}, 0x33333334")
    e(f"s_mul_i32 s{s_pk}, s{s_tmp2}, 5"); e(f"s_sub_u32 s{s_tmp}, s{s_tmp}, s{s_pk}")
    e(f"s_mul_i32 s{s_pk}, s{s_tmp2}, 40960"); e(f"s_lshl_b32 s{s_pk+1}, s{s_tmp}, 8"); e(f"s_add_u32 s{s_pk}, s{s_pk}, s{s_pk+1}")
    e(f"s_mul_i32 s{s_pk+1}, s{s_tmp}, {8*192*1024}"); e(f"s_lshl_b32 s{s_tmp2}, s{s_tmp2}, 10")
    e(f"s_add_u32 s{s_pk+1}, s{s_pk+1}, s{s_tmp2}"); e(f"s_add_u32 s{s_pk+1}, s{s_pk+1}, {WS_WO}")
    e(f"s_lshl_b32 s{s_pk+2}, s{s_wave}, 13")
    e(f"s_mov_b32 s{s_c}, {f32(CSCALE)}"); e(f"s_mov_b32 s{s_c+1}, {f32(CSCALE)}"); e(f"s_mov_b32 s{s_thr}, {f32(THR)}")
    for i in range(192): e(f"v_accvgpr_write_b32 a{i}, 0")
    def vmwait(tags):
        last = max(k for k, t in enumerate(vm) if t in tags)
        return min(63, len(vm) - 1 - last)
    lg = LG()
    stamp()
    e(f"s_mov_b32 s{s_vrd}, {VBASE + (NV-1)*TILE}")
    for r in adv_vrd(0): e(r)
    e(f"s_waitcnt vmcnt({vmwait([('W',0),('x',0)])})"); e("s_barrier")
    for r in xread(0): e(r); lg.issue(("x", 0))
    qp = [(s, dt) for s in range(2) for dt in range(6)]
    for p in range(PD):
        for r in vread(p % NF, qp[p][1], qp[p][0], 0): e(r); lg.issue((0, p))
    stamp()
    zero_q = []
    ksched = {12: 0, 13: 1, 16: 2, 17: 3, 18: 4, 19: 5}
    if "nok" in X: ksched = {}
    for i in range(20):
        par = i & 1
        misc = {}
        def put(slot, grp, tags=None): misc.setdefault(slot, []).append((grp, tags))
        st = i + NV - 1
        isw = st < 20
        put(3, "BAR")
        grp = []
        if i in ksched:
            for k, g in enumerate(dma_k() + [adv_km()]): grp.append((g, [("K", ksched[i])] if k < 3 else None))
        xs = {0: [(1, k) for k in range(4)], 1: [(2, k) for k in range(4)]}.get(i, [(i // 2 + 2, 2 * (i % 2) + k) for k in range(2)] if i // 2 + 2 < 10 else [])
        xg = []
        for n2, k2 in xs:
            g = xdma(n2)[k2]
            xg.append((g[:3], [("x", n2)])); xg.append(([g[0], g[1], g[3]], [("x", n2)]))
        wg_ = []
        for st in {0: [2, 3], 1: [4, 5], 2: [6, 7]}.get(i, [i + 5]):
            wt = wtile(st < 20, st)
            for k in range(3): wg_.append(([f"s_mov_b32 m0, s{s_vm}", "s_nop 0", wt[k][-1]] + (wt[3] if k == 2 else []), [("W", st)]))
        if "noilv" in X or i >= 16 or i == 0: grp += (xg + wg_) if i == 0 else (wg_ + xg)
        else:
            a_, b_ = list(wg_), list(xg)
            while a_ or b_:
                if a_: grp.append(a_.pop(0))
                if b_: grp.append(b_.pop(0))
        last = int(OPT.get("qlast", "23"))
        for k, (g, tags) in enumerate(grp): put(4 + (k * (last - 4 + 1)) // len(grp), g, tags)
        if i % 2 == 1 and i < 19: put(12, ("XR", (i + 1) // 2))
        if i < 19: put(14, adv_vrd(1 - par))
        else: put(14, [f"s_mov_b32 s{s_krd}, {KBASE+(NK-1)*TILE}"] + adv_krd(0))
        for p in range(12):
            s, dt = qp[p]; fr = p % NF
            for qt in range(2):
                slot = 2 * p + qt
                if qt == 0:
                    if p == 0 and i % 2 == 0: lg.wait(("x", i // 2))
                    lg.wait((par, p))
                acc = vr(qacc(dt, qt), 16)
                c = "0" if (i == 0 and s == 0) else acc
                e(f"v_mfma_f32_32x32x16_bf16 {acc}, {vr(FR+4*fr,4)}, {ar(192+32*((i//2)%2)+16*(i%2)+4*(2*s+qt),4)}, {c}")
                if qt == 0:
                    pp = p + PD
                    if pp < 12:
                        for r in vread(pp % NF, qp[pp][1], qp[pp][0], par): e(r); lg.issue((par, pp))
                    elif i < 19:
                        for r in vread((pp - 12) % NF, qp[pp-12][1], qp[pp-12][0], 1 - par): e(r); lg.issue((1 - par, pp - 12))
                    else:
                        for r in kread((pp - 12) % NF, pp - 12, 0): e(r); lg.issue(("q0", pp - 12))
                for g, tags in misc.get(slot, []):
                    if g == "BAR":
                        need = [("W", i + 1)] if i < 19 else [("K", 0), ("K", 1), ("W", 22)]
                        if "nok" in X: need = [("W", 20)]
                        e(f"s_waitcnt vmcnt({vmwait(need)})"); e("s_barrier")
                    elif isinstance(g, tuple):
                        e(f"s_waitcnt vmcnt({vmwait([('x', g[1])])})")
                        for r in xread(g[1]): e(r); lg.issue(("x", g[1]))
                    else:
                        for r in g: e(r)
                        if tags: vm += tags
                if zero_q: e(zero_q.pop())
    while zero_q: e(zero_q.pop())
    stamp()
    e("s_nop 15")
    for dt in (4, 5, 0, 1, 2, 3):
        for qt in range(2):
            for a in range(2):
                t = 2 * dt + a; src = qacc(dt, qt) + 8 * a
                for j in range(4): e(f"v_pk_mul_f32 {vr(src+2*j,2)}, {vr(src+2*j,2)}, s[{s_c}:{s_c+1}]")
                if t < 4:
                    d = QV + 4 * (2 * t + qt)
                    for j in range(4): e(f"v_cvt_pk_bf16_f32 v{d+j}, v{src+2*j}, v{src+2*j+1}")
                else:
                    d = (224 + 4 * (2 * (t - 4) + qt)) if t < 8 else (192 + 4 * (2 * (t - 8) + qt))
                    for j in range(4): e(f"v_cvt_pk_bf16_f32 v{TMP+j}, v{src+2*j}, v{src+2*j+1}")
                    for j in range(4): e(f"v_accvgpr_write_b32 a{d+j}, v{TMP+j}")
    e("s_nop 1")
    stamp()
    for p in range(12):
        fr = p % NF
        lg.wait(("q0", p))
        for qt in range(2):
            c = "0" if p == 0 else vr(S[0] + 16 * qt, 16)
            e(f"v_mfma_f32_32x32x16_bf16 {vr(S[0]+16*qt,16)}, {vr(FR+4*fr,4)}, {qfrag(p,qt)}, {c}")
            if qt == 0 and p + PD < 12:
                for r in kread((p + PD) % NF, p + PD, 0): e(r); lg.issue(("q0", p + PD))
    for r in adv_krd(0): e(r)
    for p in range(PD):
        for r in kread(p % NF, p, 0): e(r); lg.issue((0, p))
    e("s_nop 15")
    for qt in range(2):
        d = v_t + 1; tmp = v_t + 2
        halfmax(S[0] + 16 * qt, d, tmp)
        for i in range(16):
            e(f"v_sub_f32 v{S[0]+16*qt+i}, v{S[0]+16*qt+i}, v{d}")
            e(f"v_sub_f32 v{NEGM+16*qt+i}, 0, v{d}")
        e(f"v_mov_b32 v{v_l+qt}, 0")
    e("s_nop 7")
    e(f"s_mov_b32 s{s_vrd}, {VBASE + ((20 - 1) % NV) * TILE}")
    VMW0[0] = vmwait([('K', 2), ('W', 20)]) if "nok" not in X else 0
    return lg


def kernel_a_tail(lg):
    iteration(0, True, True, False, (True, True), chk=None, dma=False, vm_wait=6, lg=lg) if False else None
    global dma_v, adv_vm
    sv, sa = dma_v, adv_vm
    dma_v = lambda isw: []; adv_vm = lambda step: []
    if PKL:
        e(f"v_lshrrev_b32 v{v_pk}, 3, v{v_lane}"); e(f"v_mul_u32_u24 v{v_pk}, 1280, v{v_pk}")
        e(f"v_and_b32 v{v_pk+1}, 7, v{v_lane}"); e(f"v_lshl_add_u32 v{v_pk}, v{v_pk+1}, 4, v{v_pk}")
        e(f"s_lshl_b32 s{s_pk+2}, s{s_wave}, 12"); e(f"s_add_u32 s{s_pk+2}, s{s_pk+2}, 147456")
        e(f"v_lshrrev_b32 v{v_pk+1}, 4, v{v_lane}"); e(f"v_lshlrev_b32 v{v_pk+1}, 10, v{v_pk+1}")
        e(f"v_bfe_u32 v{v_pk+2}, v{v_lane}, 2, 2"); e(f"v_lshl_add_u32 v{v_pk+1}, v{v_pk+2}, 7, v{v_pk+1}")
        e(f"v_and_b32 v{v_pk+2}, 3, v{v_lane}"); e(f"v_lshl_add_u32 v{v_pk+1}, v{v_pk+2}, 3, v{v_pk+1}")
        e(f"v_add_u32 v{v_pk+1}, s{s_pk+2}, v{v_pk+1}"); e(f"v_lshlrev_b32 v{v_pk+2}, 4, v{v_lane}")
    def pkdma(r): return [[f"s_add_u32 m0, s{s_pk+2}, {1024*j}", f"s_add_u32 s{s_xo}, s{s_pk}, {128*r+10240*j}",
                           f"buffer_load_dwordx4 v{v_pk}, s[{sWO}:{sWO+3}], s{s_xo} offen nt lds"] for j in range(4)]
    iteration(0, True, True, False, (True, True), chk=None, vm_wait=VMW0[0], lg=lg, extra={10 + 3 * j: g for j, g in enumerate(pkdma(0))} if PKL else None)
    dma_v, adv_vm = sv, sa
    e("s_nop 7")
    stamp()
    e(f"s_mov_b32 s{s_cnt}, 15")
    lab("A_LOOP")
    iteration(1, True, True, True, (True, True), chk="RARE1", lg=lg)
    iteration(0, True, True, True, (True, True), chk="RARE0", lg=lg)
    if PKL:
        e(f"s_cmp_eq_u32 s{s_cnt}, 9"); e(f"s_cbranch_scc1 PK1"); lab(f"PK1_ret")
    e(f"s_sub_u32 s{s_cnt}, s{s_cnt}, 1"); e(f"s_cmp_lg_u32 s{s_cnt}, 0"); e("s_cbranch_scc1 A_LOOP")
    stamp()
    e("s_waitcnt lgkmcnt(0)")
    vs = [(s, dt) for s in range(2) for dt in range(6)]
    for p in range(PD):
        for r in vread(p % NF, vs[p][1], vs[p][0], 1): e(r); lg.issue((1, p))
    if not PKL:
        e(f"v_lshrrev_b32 v{v_pk}, 4, v{v_lane}"); e(f"v_mul_u32_u24 v{v_pk}, 1280, v{v_pk}")
        e(f"v_and_b32 v{v_pk+1}, 15, v{v_lane}"); e(f"v_lshl_add_u32 v{v_pk}, v{v_pk+1}, 4, v{v_pk}")
        e(f"v_lshrrev_b32 v{v_pk+1}, 4, v{v_lane}"); e(f"v_lshlrev_b32 v{v_pk+1}, 11, v{v_pk+1}")
        e(f"v_bfe_u32 v{v_pk+2}, v{v_lane}, 2, 2"); e(f"v_lshl_add_u32 v{v_pk+1}, v{v_pk+2}, 8, v{v_pk+1}")
        e(f"v_and_b32 v{v_pk+2}, 3, v{v_lane}"); e(f"v_lshl_add_u32 v{v_pk+1}, v{v_pk+2}, 3, v{v_pk+1}")
        e(f"v_add_u32 v{v_pk+1}, s{s_pk+2}, v{v_pk+1}"); e(f"v_lshlrev_b32 v{v_pk+2}, 4, v{v_lane}")
    pk2 = {4: [f"ds_read_b64_tr_b16 {vr(64+4*f+2*h,2)}, v{v_pk+1} offset:{32*f+512*h}" for f in range(2) for h in range(2)],
           5: [f"ds_read_b64_tr_b16 {vr(64+4*f+2*h,2)}, v{v_pk+1} offset:{32*f+512*h}" for f in range(2, 4) for h in range(2)]}
    for f in range(4):
        pk2[12 + 2 * f] = [f"buffer_store_dwordx4 {vr(64+4*f,4)}, v{v_pk+2}, s[{sPW}:{sPW+3}], s{s_pk+1} offen{OST}", f"s_add_u32 s{s_pk+1}, s{s_pk+1}, {192*1024}"]
    if PKL:
        for i in range(4): e(f"s_mov_b32 s{sPW+i}, s{sWS+i}")
        e("s_cmp_ge_u32 s2, 240"); e(f"s_cselect_b32 s{sPW+2}, 0, s{sPW+2}")
    pk = [[f"s_add_u32 m0, s{s_pk+2}, {1024*j}", f"s_add_u32 s{s_xo}, s{s_pk}, {5120*j}",
           f"buffer_load_dwordx4 v{v_pk}, s[{sWO}:{sWO+3}], s{s_xo} offen nt lds"] for j in range(8)]
    iteration(1, False, True, True, (False, True), chk="RARE2", dma=False, vm_wait=0, lg=lg, extra=pk2 if PKL else pk)
    iteration(0, False, False, True, (False, False), dma=False, vm_wait=None, lg=lg)
    stamp()
    e("s_nop 15")
    for qt in range(2):
        e(f"v_mov_b32 v{v_t}, v{v_l+qt}"); e("s_nop 1")
        e(f"v_permlane32_swap_b32 v{v_l+qt}, v{v_t}"); e("s_nop 1")
        e(f"v_add_f32 v{v_l+qt}, v{v_l+qt}, v{v_t}"); e(f"v_rcp_f32 v{v_l+qt}, v{v_l+qt}")
    T0, T1, T2, T3 = 232, 233, 234, 235
    e(f"v_lshrrev_b32 v{T3}, 5, v{v_lane}")
    e(f"v_bfe_u32 v{T0}, v{v_lane}, 4, 1"); e(f"s_lshl_b32 s{s_tmp}, s{s_wave}, 2"); e(f"v_add_u32 v{T0}, s{s_tmp}, v{T0}")
    e(f"s_mov_b32 s{s_tmp2}, 196608"); e(f"v_mul_lo_u32 v{T0}, v{T0}, s{s_tmp2}")
    e(f"v_lshl_add_u32 v{T0}, v{T3}, 8, v{T0}"); e(f"v_and_b32 v{T1}, 15, v{v_lane}"); e(f"v_lshl_add_u32 v{v_oo}, v{T1}, 4, v{T0}")
    e(f"v_add_u32 v{v_oo+1}, {2*196608}, v{v_oo}")
    e(f"s_mul_i32 s{s_tmp}, s{s_b}, {16*196608}"); e(f"s_mul_i32 s{s_tmp2}, s{s_h}, 6144"); e(f"s_add_u32 s{s_tmp}, s{s_tmp}, s{s_tmp2}")
    e(f"s_add_u32 s{s_tmp2}, s{s_tmp}, 4096")
    k = 0
    for dt in range(6):
        for qt in range(2):
            for a in range(2):
                b = 64 + 12 * (k % 8); k += 1
                src = oacc(dt, qt) + 8 * a
                for j in range(8): e(f"v_accvgpr_read_b32 v{b+j}, a{src+j}")
                for j in range(4): e(f"v_pk_mul_f32 {vr(b+2*j,2)}, {vr(b+2*j,2)}, {vr(v_l,2)} op_sel:[0,{qt}] op_sel_hi:[1,{qt}]")
                for j in range(4): e(f"v_cvt_pk_bf16_f32 v{b+8+j}, v{b+2*j}, v{b+2*j+1}")
                off = dt * 1024 + a * 512
                so = s_tmp if off < 4096 else s_tmp2
                e(f"buffer_store_dwordx4 {vr(b+8,4)}, v{v_oo+qt}, s[{sWS}:{sWS+3}], s{so} offen offset:{off%4096}{OST}")
    if not PKL:
        e("s_cmp_ge_u32 s2, 240"); e("s_cbranch_scc1 A_NOPK")
        e("s_waitcnt vmcnt(24)")
        for f in range(8):
            e(f"ds_read_b64_tr_b16 {vr(160+4*f,2)}, v{v_pk+1} offset:{32*f}"); e(f"ds_read_b64_tr_b16 {vr(162+4*f,2)}, v{v_pk+1} offset:{32*f+1024}")
        for f in range(8):
            e(f"s_waitcnt lgkmcnt({14-2*f})")
            e(f"buffer_store_dwordx4 {vr(160+4*f,4)}, v{v_pk+2}, s[{sWS}:{sWS+3}], s{s_pk+1} offen{OST}")
            if f < 7: e(f"s_add_u32 s{s_pk+1}, s{s_pk+1}, {192*1024}")
        lab("A_NOPK")
    e("s_waitcnt vmcnt(0)") if STAMP else None
    stamp()
    stamp_flush()
    lab("A_END")
    e("s_endpgm")
    if PKL:
        FT = [TMP, TMP + 4, 232, 236]
        for r in (1,):
            lab(f"PK{r}")
            e("s_cmp_ge_u32 s2, 240"); e(f"s_cbranch_scc1 PK{r}_ret")
            if r > 0:
                for f in range(4):
                    e(f"ds_read_b64_tr_b16 {vr(FT[f],2)}, v{v_pk+1} offset:{32*f}"); e(f"ds_read_b64_tr_b16 {vr(FT[f]+2,2)}, v{v_pk+1} offset:{32*f+512}")
                for f in range(4):
                    e(f"s_waitcnt lgkmcnt({6-2*f})")
                    e(f"buffer_store_dwordx4 {vr(FT[f],4)}, v{v_pk+2}, s[{sWS}:{sWS+3}], s{s_pk+1} offen{OST}")
                    e(f"s_add_u32 s{s_pk+1}, s{s_pk+1}, {192*1024}")
            if r < 2:
                for j in range(4):
                    e(f"s_add_u32 m0, s{s_pk+2}, {1024*j}"); e(f"s_add_u32 s{s_xo}, s{s_pk}, {128*r+10240*j}")
                    e(f"buffer_load_dwordx4 v{v_pk}, s[{sWO}:{sWO+3}], s{s_xo} offen nt lds")
            if r > 0: e("s_nop 4")
            e(f"s_branch PK{r}_ret")
    rare("RARE1", 1, True); rare("RARE0", 0, True); rare("RARE2", 1, False)

def kernel_pack():
    K = "pack_kernel"
    L.append(f".globl {K}\n.p2align 8\n.type {K},@function"); lab(K)
    e("s_cmp_ge_u32 s2, 240"); e("s_cbranch_scc1 P_END")
    e("s_load_dwordx2 s[4:5], s[0:1], 32"); e("s_load_dwordx2 s[6:7], s[0:1], 56")
    e("v_lshrrev_b32 v1, 6, v0"); e("v_and_b32 v0, 63, v0"); e("s_nop 0"); e("v_readfirstlane_b32 s3, v1")
    e("s_waitcnt lgkmcnt(0)")
    srd(8, 4, 5, 7864320); srd(12, 6, 7, WS_BYTES)
    e("s_lshl_b32 s16, s2, 2"); e("s_add_u32 s16, s16, s3")
    e("s_mul_hi_u32 s17, s16, 0x33333334")
    e("s_mul_i32 s18, s17, 5"); e("s_sub_u32 s18, s16, s18")
    e("v_lshrrev_b32 v1, 4, v0"); e("v_mul_u32_u24 v1, 10240, v1"); e("v_and_b32 v2, 15, v0"); e("v_lshl_add_u32 v1, v2, 1, v1")
    e("s_mul_i32 s19, s17, 40960"); e("s_lshl_b32 s20, s18, 8"); e("s_add_u32 s19, s19, s20")
    for j in range(8): e(f"v_add_u32 v{2+j}, {1280*j}, v1")
    for i in range(8):
        for j in range(8):
            e(f"buffer_load_ushort v{64+8*i+j}, v{2+j}, s[8:11], s19 offen offset:{32*i}")
        if i == 6: e("s_waitcnt vmcnt(40)")
    e("v_lshlrev_b32 v1, 4, v0")
    e("s_mul_i32 s20, s18, %d" % (8 * 192 * 1024)); e("s_lshl_b32 s21, s17, 10"); e("s_add_u32 s20, s20, s21"); e(f"s_add_u32 s20, s20, {WS_WO}")
    e("s_waitcnt vmcnt(0)")
    for i in range(8):
        for j in range(4): e(f"v_lshl_or_b32 v{16+4*i+j}, v{64+8*i+2*j+1}, 16, v{64+8*i+2*j}")
    for i in range(8):
        e(f"buffer_store_dwordx4 {vr(16+4*i,4)}, v1, s[12:15], s20 offen")
        e(f"s_add_u32 s20, s20, {192*1024}")
    lab("P_END"); e("s_endpgm")

def kernel_b():
    K = "oproj_kernel"
    L.append(f".globl {K}\n.p2align 8\n.type {K},@function"); lab(K)
    OT = OPT.get("otest") == "1"; KS = 24 if OT else 48
    e(f"s_cmp_ge_u32 s2, {512 if OT else 256}"); e("s_cbranch_scc1 B_END")
    if OT: e("s_lshr_b32 s30, s2, 8"); e("s_and_b32 s2, s2, 255"); e("s_mul_i32 s30, s30, 24576")
    e("s_load_dwordx2 s[4:5], s[0:1], 40"); e("s_load_dwordx2 s[6:7], s[0:1], 56")
    e("v_lshrrev_b32 v1, 6, v0"); e("v_and_b32 v0, 63, v0"); e("s_nop 0"); e("v_readfirstlane_b32 s3, v1")
    e("s_waitcnt lgkmcnt(0)")
    if STAMP: e("s_memrealtime s[40:41]"); e("s_memtime s[44:45]")
    srd(8, 4, 5, 2621440); srd(12, 6, 7, WS_BYTES)
    e("s_and_b32 s16, s2, 7"); e("s_lshr_b32 s17, s2, 3"); e("s_and_b32 s18, s17, 3"); e("s_lshl_b32 s16, s16, 2"); e("s_add_u32 s16, s16, s18")
    e("s_lshr_b32 s17, s17, 2")
    if OPT.get("omap") == "1":
        e("s_and_b32 s16, s2, 7"); e("s_lshr_b32 s17, s2, 3")
        e("s_lshr_b32 s18, s16, 1"); e("s_lshl_b32 s18, s18, 3"); e("s_and_b32 s19, s17, 7"); e("s_add_u32 s18, s18, s19")
        e("s_and_b32 s16, s16, 1"); e("s_lshl_b32 s16, s16, 2"); e("s_lshr_b32 s17, s17, 3"); e("s_add_u32 s17, s17, s16")
        e("s_mov_b32 s16, s18")
    if OPT.get("omap") == "2":
        e("s_lshr_b32 s16, s2, 3"); e("s_and_b32 s17, s2, 7")
    e("s_mul_i32 s20, s16, %d" % (4 * 196608)); e("s_mul_i32 s22, s3, %d" % (48 * 1024)); e("s_add_u32 s20, s20, s22")
    if OT: e("s_add_u32 s22, s22, s30"); e("s_add_u32 s20, s20, s30")
    e("s_mul_i32 s21, s17, %d" % (5 * 196608)); e("s_add_u32 s21, s21, s22"); e(f"s_add_u32 s21, s21, {WS_WO}")
    if "osameO" in X: e("s_mov_b32 s20, s22")
    if "osameW" in X: e(f"s_add_u32 s21, s22, {WS_WO}")
    e("v_lshlrev_b32 v1, 4, v0")
    for i in range(1, 5): e(f"v_add_u32 v{1+i}, {196608*i}, v1")
    ACC = 16; FRB = 96; D = int(OPT.get("od", "4")); LA = D - 1
    def slot(k, o, n):
        j = k % D
        return vr(FRB + 36 * j + o, n) if j < 4 else ar(36 * (j - 4) + o, n)
    def loads(k):
        r = [f"buffer_load_dwordx4 {slot(k,4*i,4)}, v{1+i}, s[12:15], s20 offen" for i in range(4)]
        r += [f"buffer_load_dwordx4 {slot(k,16+4*i,4)}, v{1+i}, s[12:15], s21 offen" for i in range(5)]
        if "oldsdma" in X:
            r = [f"buffer_load_dwordx4 v{1+i}, s[12:15], s20 offen offset:{0} lds" for i in range(4)]
            r += [f"buffer_load_dwordx4 v{1+i}, s[12:15], s21 offen offset:{0} lds" for i in range(5)]
        r += ["s_add_u32 s20, s20, 1024", "s_add_u32 s21, s21, 1024"]
        return r
    def mf(k, first):
        r = []
        for n in range(5):
            for m in range(4):
                acc = vr(ACC + 4 * (5 * m + n), 4)
                r.append(f"v_mfma_f32_16x16x32_bf16 {acc}, {slot(k,16+4*n,4)}, {slot(k,4*m,4)}, {'0' if first else acc}")
        return r
    if "oldsdma" in X: e("s_lshl_b32 s24, s3, 12"); e("s_mov_b32 m0, s24")
    for k in range(LA):
        for r in loads(k): e(r)
    def group(k0, first, last):
        for k in range(k0, k0 + D):
            have = (not last) or (k + LA < KS)
            nl = loads(k + LA) if have else []
            outst = (LA - 1) if have else (KS - 1 - k)
            e(f"s_waitcnt vmcnt({9 * outst})")
            ms = mf(k, first and k == k0)
            for i, m in enumerate(ms):
                e(m)
                if i % 2 == 1 and nl: e(nl.pop(0))
            while nl: e(nl.pop(0))
    NG = KS // D
    group(0, True, False)
    e(f"s_mov_b32 s23, {NG - 2}")
    lab("B_LOOP")
    group(D, False, False)
    e("s_sub_u32 s23, s23, 1"); e("s_cmp_lg_u32 s23, 0"); e("s_cbranch_scc1 B_LOOP")
    group(KS - D, False, True)
    e("s_nop 15")
    e("s_mul_i32 s24, s3, 20480"); e("v_lshlrev_b32 v6, 4, v0"); e("v_add_u32 v7, s24, v6")
    for t in range(20): e(f"ds_write_b128 v7, {vr(ACC+4*t,4)} offset:{1024*t}")
    e("s_waitcnt lgkmcnt(0)"); e("s_barrier")
    e("s_mul_i32 s24, s3, 5120"); e("v_add_u32 v7, s24, v6"); e("v_add_u32 v8, 40960, v7")
    for n in range(5):
        for w in range(4):
            e(f"ds_read_b128 {vr(FRB+16*n+4*w,4)}, v{7 + (w//2)} offset:{20480*(w%2)+1024*n}")
    e("s_lshl_b32 s24, s16, 6"); e("s_lshl_b32 s25, s3, 4"); e("s_add_u32 s24, s24, s25")
    e("v_and_b32 v9, 15, v0"); e("v_add_u32 v9, s24, v9"); e("v_mul_u32_u24 v9, 1280, v9")
    e("v_lshrrev_b32 v10, 4, v0"); e("v_lshl_add_u32 v9, v10, 3, v9"); e("s_mul_i32 s25, s17, 160")
    for n in range(5):
        e(f"s_waitcnt lgkmcnt({min(15, 4*(4-n))})")
        b = FRB + 16 * n
        for j in range(4):
            e(f"v_add_f32 v{b+j}, v{b+j}, v{b+4+j}"); e(f"v_add_f32 v{b+8+j}, v{b+8+j}, v{b+12+j}")
        for j in range(4): e(f"v_add_f32 v{b+j}, v{b+j}, v{b+8+j}")
        e(f"v_cvt_pk_bf16_f32 v{b+4}, v{b}, v{b+1}"); e(f"v_cvt_pk_bf16_f32 v{b+5}, v{b+2}, v{b+3}")
        e(f"buffer_store_dwordx2 {vr(b+4,2)}, v9, s[8:11], s25 offen offset:{32*n}")
    if STAMP:
        e("s_waitcnt vmcnt(0)"); e("s_memrealtime s[42:43]"); e("s_memtime s[46:47]"); e("s_waitcnt lgkmcnt(0)")
        e("s_cmp_lg_u32 s3, 0"); e("s_cbranch_scc1 B_END")
        e("s_lshl_b32 s24, s2, 4"); e("s_add_u32 s24, s24, 0x4800000"); e("v_mov_b32 v1, s24")
        e("s_sub_u32 s46, s46, s44")
        for i, r in enumerate((40, 42, 46)):
            e(f"v_mov_b32 v2, s{r}"); e(f"buffer_store_dword v2, v1, s[12:15], 0 offen offset:{4*i}")
    lab("B_END"); e("s_endpgm")

WS_PART = 0x2000000
def kernel_b4():
    K = "oproj_kernel"
    L.append(f".globl {K}\n.p2align 8\n.type {K},@function"); lab(K)
    e("s_cmp_ge_u32 s2, 256"); e("s_cbranch_scc1 B_END")
    e("s_load_dwordx2 s[6:7], s[0:1], 56")
    e("v_lshrrev_b32 v1, 6, v0"); e("v_and_b32 v0, 63, v0"); e("s_nop 0"); e("v_readfirstlane_b32 s3, v1")
    e("s_and_b32 s16, s2, 3")
    e("s_bfe_u32 s17, s2, 0x10002"); e("s_lshl_b32 s17, s17, 3"); e("s_bfe_u32 s18, s2, 0x30003"); e("s_add_u32 s17, s17, s18")
    e("s_lshr_b32 s18, s2, 6")
    e("s_mul_i32 s19, s16, 49152")
    e("s_mul_i32 s20, s17, %d" % (8 * 196608)); e("s_add_u32 s20, s20, s19")
    e("s_mul_i32 s21, s18, %d" % (10 * 196608)); e("s_add_u32 s21, s21, s19"); e(f"s_add_u32 s21, s21, {WS_WO}")
    e("v_lshlrev_b32 v1, 4, v0")
    e("s_mul_i32 s22, s3, %d" % (2 * 196608)); e("v_add_u32 v2, s22, v1"); e(f"v_add_u32 v3, {196608-2048}, v2")
    for c in range(5):
        e("s_mul_i32 s22, s3, 5"); e(f"s_add_u32 s22, s22, {c}")
        e("s_lshr_b32 s23, s22, 1"); e("s_mul_i32 s23, s23, 196608"); e("s_and_b32 s22, s22, 1"); e("s_lshl_b32 s22, s22, 10"); e("s_add_u32 s23, s23, s22")
        if c in (1, 2, 3): e(f"s_sub_u32 s23, s23, {1024*c}")
        e(f"v_add_u32 v{4+c}, s23, v1")
    e("s_lshl_b32 s24, s3, 12"); e("s_mul_i32 s25, s3, 5120"); e("s_add_u32 s25, s25, 16384")
    e("s_and_b32 s22, s3, 1"); e("s_lshl_b32 s22, s22, 13"); e("v_add_u32 v9, s22, v1")
    e("s_lshr_b32 s22, s3, 1"); e("s_mul_i32 s22, s22, 10240"); e("s_add_u32 s22, s22, 16384"); e("v_add_u32 v10, s22, v1")
    e("v_add_u32 v11, 73728, v9"); e("v_add_u32 v12, 73728, v10")
    e("s_waitcnt lgkmcnt(0)")
    if STAMP: e("s_memrealtime s[40:41]"); e("s_memtime s[44:45]")
    srd(12, 6, 7, WS_BYTES)
    SL = 36864; ACC = 16; FA = 96
    def dmas(q):
        b = SL * q
        r = [[f"s_add_u32 m0, s24, {b}", "s_nop 0", "buffer_load_dwordx4 v2, s[12:15], s20 offen lds"],
             ["buffer_load_dwordx4 v2, s[12:15], s20 offen offset:1024 lds"],
             ["buffer_load_dwordx4 v3, s[12:15], s20 offen offset:2048 lds"],
             ["buffer_load_dwordx4 v3, s[12:15], s20 offen offset:3072 lds", "s_add_u32 s20, s20, 2048"],
             [f"s_add_u32 m0, s25, {b}", "s_nop 0", "buffer_load_dwordx4 v4, s[12:15], s21 offen lds"]]
        for c in (1, 2, 3): r.append([f"buffer_load_dwordx4 v{4+c}, s[12:15], s21 offen offset:{1024*c} lds"])
        r.append([f"s_add_u32 m0, s25, {b+4096}", "s_nop 0", "buffer_load_dwordx4 v8, s[12:15], s21 offen lds", "s_add_u32 s21, s21, 2048"])
        return r
    def stage(q, first, vmw, more):
        e(f"s_waitcnt vmcnt({vmw})"); e("s_barrier")
        ra, rb = (9, 10) if q < 2 else (11, 12)
        b = SL * (q % 2)
        for ts in range(2):
            f = FA + 36 * ts
            order = [("W", 0)] + [("O", m) for m in range(4)] + [("W", n) for n in range(1, 5)]
            for kind, i in order:
                if kind == "W": e(f"ds_read_b128 {vr(f+16+4*i,4)}, v{rb} offset:{b+2048*i+1024*ts}")
                else: e(f"ds_read_b128 {vr(f+4*i,4)}, v{ra} offset:{b+2048*i+1024*ts}")
        d = dmas((q + 3) % 4) if more else []
        cnt = 0
        for ts in range(2):
            f = FA + 36 * ts
            for n in range(5):
                for m in range(4):
                    pos = 9 * ts + max(0 if n == 0 else 4 + n, 1 + m)
                    if m == 0 or n == 0: e(f"s_waitcnt lgkmcnt({min(15, 17 - pos)})")
                    acc = vr(ACC + 4 * (5 * m + n), 4)
                    e(f"v_mfma_f32_16x16x32_bf16 {acc}, {vr(f+16+4*n,4)}, {vr(f+4*m,4)}, {'0' if (first and ts == 0) else acc}")
                    cnt += 1
                    if cnt % 4 == 2 and d:
                        for r in d.pop(0): e(r)
        assert not d
    for q in range(3):
        for g in dmas(q):
            for r in g: e(r)
    stage(0, True, 18, True)
    for q in (1, 2, 3): stage(q, False, 18, True)
    e("s_mov_b32 s23, 4")
    lab("B_LOOP")
    for q in range(4): stage(q, False, 18, True)
    e("s_sub_u32 s23, s23, 1"); e("s_cmp_lg_u32 s23, 0"); e("s_cbranch_scc1 B_LOOP")
    stage(0, False, 18, True); stage(1, False, 18, False); stage(2, False, 9, False); stage(3, False, 0, False)
    e("s_lshl_b32 s22, s17, 2"); e("s_add_u32 s22, s22, s18"); e("s_lshl_b32 s22, s22, 2"); e("s_add_u32 s22, s22, s3")
    e("s_lshl_b32 s22, s22, 2"); e("s_add_u32 s22, s22, s16"); e("s_mul_i32 s22, s22, 20480"); e(f"s_add_u32 s22, s22, {WS_PART}")
    e("s_nop 7")
    if "opre" in X: e("s_memtime s[46:47]")
    for t in range(20):
        e(f"buffer_store_dwordx4 {vr(ACC+4*t,4)}, v1, s[12:15], s22 offen offset:{1024*(t%4)}{PST}")
        if t % 4 == 3: e("s_add_u32 s22, s22, 4096")
    if STAMP:
        e("s_waitcnt vmcnt(0)"); e("s_memrealtime s[42:43]")
        if "opre" not in X: e("s_memtime s[46:47]")
        e("s_waitcnt lgkmcnt(0)")
        e("s_cmp_lg_u32 s3, 0"); e("s_cbranch_scc1 B_END")
        e("s_lshl_b32 s24, s2, 4"); e("s_add_u32 s24, s24, 0x4800000"); e("v_mov_b32 v1, s24")
        e("s_sub_u32 s46, s46, s44")
        for i, r in enumerate((40, 42, 46)):
            e(f"v_mov_b32 v2, s{r}"); e(f"buffer_store_dword v2, v1, s[12:15], 0 offen offset:{4*i}")
    lab("B_END"); e("s_endpgm")

def kernel_r():
    K = "reduce_kernel"
    L.append(f".globl {K}\n.p2align 8\n.type {K},@function"); lab(K)
    e("s_cmp_ge_u32 s2, 256"); e("s_cbranch_scc1 R_END")
    e("s_load_dwordx2 s[4:5], s[0:1], 40"); e("s_load_dwordx2 s[6:7], s[0:1], 56")
    e("v_lshrrev_b32 v1, 6, v0"); e("v_and_b32 v0, 63, v0"); e("s_nop 0"); e("v_readfirstlane_b32 s3, v1")
    e("v_lshlrev_b32 v1, 4, v0")
    e("s_mul_i32 s20, s2, 81920"); e("s_mul_i32 s21, s3, 5120"); e("s_add_u32 s20, s20, s21"); e(f"s_add_u32 s20, s20, {WS_PART}")
    e("s_add_u32 s21, s20, 4096")
    e("s_lshr_b32 s16, s2, 4"); e("s_lshl_b32 s16, s16, 7"); e("s_and_b32 s17, s2, 1"); e("s_lshl_b32 s17, s17, 6"); e("s_add_u32 s16, s16, s17")
    e("s_lshl_b32 s17, s3, 4"); e("s_add_u32 s16, s16, s17")
    e("s_bfe_u32 s17, s2, 0x20002"); e("s_mul_i32 s17, s17, 320"); e("s_bfe_u32 s18, s2, 0x10001"); e("s_mul_i32 s18, s18, 160"); e("s_add_u32 s17, s17, s18")
    e("v_and_b32 v9, 15, v0"); e("v_add_u32 v9, s16, v9"); e("v_mul_u32_u24 v9, 1280, v9")
    e("v_lshrrev_b32 v10, 4, v0"); e("v_lshl_add_u32 v9, v10, 3, v9")
    e("s_waitcnt lgkmcnt(0)")
    srd(8, 4, 5, 2621440); srd(12, 6, 7, WS_BYTES)
    for n in range(5):
        for s_ in range(4):
            so = "s20" if n < 4 else "s21"
            e(f"buffer_load_dwordx4 {vr(16+16*n+4*s_,4)}, v1, s[12:15], {so} offen offset:{1024*(n%4)}")
            e("s_add_u32 s20, s20, 20480") if n < 4 else e("s_add_u32 s21, s21, 20480")
        if n < 4: e("s_sub_u32 s20, s20, 81920")
    for n in range(5):
        e(f"s_waitcnt vmcnt({4*(4-n) + n})")
        b = 16 + 16 * n
        for s_ in (1, 2, 3):
            for j in range(4): e(f"v_add_f32 v{b+j}, v{b+j}, v{b+4*s_+j}")
        e(f"v_cvt_pk_bf16_f32 v{b+4}, v{b}, v{b+1}"); e(f"v_cvt_pk_bf16_f32 v{b+5}, v{b+2}, v{b+3}")
        e(f"buffer_store_dwordx2 {vr(b+4,2)}, v9, s[8:11], s17 offen offset:{32*n}")
    if STAMP:
        e("s_waitcnt vmcnt(0)"); e("s_memrealtime s[42:43]"); e("s_waitcnt lgkmcnt(0)")
        e("s_cmp_lg_u32 s3, 0"); e("s_cbranch_scc1 R_END")
        e("s_lshl_b32 s24, s2, 4"); e("s_add_u32 s24, s24, 0x4800000"); e("v_mov_b32 v1, s24")
        e(f"v_mov_b32 v2, s42"); e(f"buffer_store_dword v2, v1, s[12:15], 0 offen offset:12")
    lab("R_END"); e("s_endpgm")

def desc(name, vg, acc, sg=102):
    L.append(f""".p2align 6
.amdhsa_kernel {name}
  .amdhsa_next_free_vgpr {vg}
  .amdhsa_next_free_sgpr {sg}
  .amdhsa_accum_offset {acc}
  .amdhsa_group_segment_fixed_size 0
  .amdhsa_kernarg_size 64
  .amdhsa_user_sgpr_count 2
  .amdhsa_user_sgpr_kernarg_segment_ptr 1
  .amdhsa_system_sgpr_workgroup_id_x 1
.end_amdhsa_kernel""")

hdr = open("standalone__mha_block_cached__near_ridge.s.ref").read().split("\n")
hdr = [h for h in hdr if h.startswith(";") and "@launch" not in h and "Override" not in h and "grid=ceil" not in h]
L += hdr
L.append(f"; @launch kernel=attn_kernel grid=(256,1,1) block=(256,1,1) lds={LDS_A}")
if OS4:
    L.append("; @launch kernel=oproj_kernel grid=(256,1,1) block=(256,1,1) lds=147456")
    L.append("; @launch kernel=reduce_kernel grid=(256,1,1) block=(256,1,1) lds=0")
else:
    L.append("; @launch kernel=oproj_kernel grid=(%d,1,1) block=(256,1,1) lds=81920" % (512 if OPT.get("otest") == "1" else 256))
L.append('.amdgcn_target "amdgcn-amd-amdhsa--gfx950"\n.text')
lg = kernel_a(); kernel_a_tail(lg)
(kernel_b4(), kernel_r()) if OS4 else kernel_b()
L.append('.section .rodata,"a"')
desc("attn_kernel", 512, 256, 102); desc("oproj_kernel", 256, 256, 48)
if OS4: desc("reduce_kernel", 128, 128, 48)
open(OUT, "w").write("\n".join(L) + "\n")
print("wrote", OUT, len(L), "lines")
```

```python
import sys, math
OUT = sys.argv[1] if len(sys.argv) > 1 else "standalone__mha_block_cached__near_ridge.s"
OPT = dict(a.split("=") for a in sys.argv[2:])
L = []
X = set(OPT.get("x", "").split(","))
def e(s):
    if "nodma" in X and s.endswith("lds"): return
    if "noxdma" in X and s.endswith("lds") and f"s[{sX}:{sX+3}]" in s: return
    if "nowdma" in X and s.endswith("lds") and f"s[{sW}:{sW+3}]" in s: return
    if "noxrd" in X and s.startswith("ds_read_b128 a["): return
    if "nolds" in X and s.startswith("ds_read"): return
    if "nosm" in X and (s.startswith("v_exp") or s.startswith("v_cvt_pk") or s.startswith("v_add_f32")): return
    if "nobar" in X and s.startswith("s_barrier"): return
    if "nomfma" in X and s.startswith("v_mfma"): return
    if "nox" in X and s.startswith("buffer_load_dwordx4 a["): return
    if "norare" in X and s.startswith("s_cbranch_vccnz"): return
    if "novm" in X and s.startswith("s_waitcnt vmcnt"): return
    if "notr" in X and s.startswith("ds_read_b64_tr"): return
    L.append("  " + s)
def lab(s): L.append(s + ":")
def vr(a, n): return f"v[{a}:{a+n-1}]"
def ar(a, n): return f"a[{a}:{a+n-1}]"

TILE = 12288
NK = 6; NV = 6
KBASE = 0; VBASE = NK * TILE
LDS_A = 163840
WS_O = 0; WS_WO = 25165824; WS_BYTES = 402653184
CSCALE = (192 ** -0.5) * math.log2(math.e)
import struct
def f32(x): return "0x%08x" % struct.unpack("<I", struct.pack("<f", x))[0]
THR = 65536.0
PST = ' ' + OPT.get('pst', 'sc0+sc1').replace('+', ' ')
OS4 = OPT.get('os4', '0') == '1'
PKL = OPT.get('pkl', '1') == '1'
IEP = OPT.get('iep', '1') == '1'
PK3 = OPT.get('pk3', '0') == '1'
OST = ' ' + OPT.get('ost', 'sc0+sc1').replace('+', ' ')
NT_KV = OPT.get("nt", "1") == "1"

sX, sK, sV, sW, sWS = 8, 12, 16, 20, 24
s_wave, s_b, s_h = 28, 29, 30
s_kd, s_vd = 31, 32
s_km, s_vm = 33, 34
s_krd, s_vrd = 35, 36
s_cnt, s_thr, s_tmp, s_tmp2 = 37, 38, 39, 44
s_c = 40
s_xo = 42
s_w3 = 43
s_kend, s_vend = 45, 46
s_xb = 58
sWO = 92
sPW = 48
s_pk = 98
v_lane = 0
v_kd = 1
v_vd = 4
v_wd = 7
v_kb = 10
v_vb = 14
v_ka = [16, 22]
v_xo = 28
v_ps = 30
FR = 32
NF = 6
TMP = 56
S = [64, 96]
P = [128, 144]
NEGM = 160
QV = 192
v_l = 224
v_p = 226
v_t = 228
v_oo = 240
v_pk = 242
def qfrag(t, qt):
    if t < 4: return vr(QV + 4 * (2 * t + qt), 4)
    if t < 8: return ar(224 + 4 * (2 * (t - 4) + qt), 4)
    return ar(192 + 4 * (2 * (t - 8) + qt), 4)
def oacc(dt, qt): return 16 * (2 * dt + qt)
def qacc(dt, qt): return 64 + 16 * (2 * dt + qt)

def srd(d, lo, hi, nrec):
    e(f"s_mov_b32 s{d}, s{lo}"); e(f"s_and_b32 s{d+1}, s{hi}, 0xffff")
    e(f"s_mov_b32 s{d+2}, {nrec}"); e(f"s_mov_b32 s{d+3}, 0x20000")

STAMP = OPT.get("stamp", "0") == "1"
stamp_n = [0]
def stamp():
    if not STAMP: return
    i = stamp_n[0]; stamp_n[0] += 1
    e(f"s_memtime s[{60+2*i}:{61+2*i}]")
    e("s_waitcnt lgkmcnt(0)") if False else None
def stamp_flush():
    if not STAMP: return
    e("s_memrealtime s[90:91]"); e("s_waitcnt lgkmcnt(0)")
    e(f"s_cmp_lg_u32 s{s_wave}, 0"); e("s_cbranch_scc1 ST_SKIP")
    e("s_lshl_b32 s6, s2, 6"); e("s_add_u32 s6, s6, 0x4000000")
    e("v_mov_b32 v1, s6")
    for i in range(stamp_n[0]):
        e(f"s_sub_u32 s6, s{60+2*i}, s60"); e("v_mov_b32 v2, s6")
        e(f"buffer_store_dword v2, v1, s[{sWS}:{sWS+3}], 0 offen offset:{4*i}")
    e("v_mov_b32 v2, s88"); e(f"buffer_store_dword v2, v1, s[{sWS}:{sWS+3}], 0 offen offset:56")
    e("v_mov_b32 v2, s90"); e(f"buffer_store_dword v2, v1, s[{sWS}:{sWS+3}], 0 offen offset:60")
    lab("ST_SKIP")

class LG:
    def __init__(s): s.n = 0; s.tag = {}
    def issue(s, tag=None):
        s.n += 1
        if tag is not None: s.tag[tag] = s.n
    def wait(s, tag):
        k = s.n - s.tag[tag]
        e(f"s_waitcnt lgkmcnt({min(k,15)})")

def kread(fr, t, par):
    return [f"ds_read_b128 {vr(FR+4*fr,4)}, v{v_ka[par]+(t%4)} offset:{128*(t//4)}"]
def vread(fr, dt, s, par):
    a = v_ka[par] + 4 + (dt & 1)
    o = 128 * (dt >> 1) + 384 * 16 * s
    return [f"ds_read_b64_tr_b16 {vr(FR+4*fr,2)}, v{a} offset:{o}",
            f"ds_read_b64_tr_b16 {vr(FR+4*fr+2,2)}, v{a} offset:{o+384*4}"]

def ring_adv(s, n_slots, base):
    return [f"s_add_u32 s{s}, s{s}, {TILE}", f"s_cmp_ge_u32 s{s}, s{n_slots}", f"s_cselect_b32 s{s}, s{base}, s{s}"]

def dma_k():
    nt = " nt" if NT_KV else ""
    r = [[f"s_mov_b32 m0, s{s_km}", "s_nop 0", f"buffer_load_dwordx4 v{v_kd}, s[{sK}:{sK+3}], s{s_kd} offen{nt} lds"]]
    for i in (1, 2): r.append([f"buffer_load_dwordx4 v{v_kd+i}, s[{sK}:{sK+3}], s{s_kd} offen offset:{1024*i}{nt} lds"])
    return r
def dma_v(isw):
    nt = " nt" if (NT_KV and not isw) else ""
    srd_, vo = (sW, v_wd) if isw else (sV, v_vd)
    r = [[f"s_mov_b32 m0, s{s_vm}", "s_nop 0", f"buffer_load_dwordx4 v{vo}, s[{srd_}:{srd_+3}], s{s_vd} offen{nt} lds"]]
    for i in (1, 2): r.append([f"buffer_load_dwordx4 v{vo+i}, s[{srd_}:{srd_+3}], s{s_vd} offen offset:{1024*i}{nt} lds"])
    return r
def adv_km(): return [f"s_add_u32 s{s_kd}, s{s_kd}, {TILE}", f"s_add_u32 s{s_km}, s{s_km}, {TILE}",
                      f"s_cmp_ge_u32 s{s_km}, s{s_kend}", f"s_cselect_b32 s{s_tmp}, {NK*TILE}, 0", f"s_sub_u32 s{s_km}, s{s_km}, s{s_tmp}"]
def adv_vm(step): return [f"s_add_u32 s{s_vd}, s{s_vd}, {step}", f"s_add_u32 s{s_vm}, s{s_vm}, {TILE}",
                      f"s_cmp_ge_u32 s{s_vm}, s{s_vend}", f"s_cselect_b32 s{s_tmp}, {NV*TILE}, 0", f"s_sub_u32 s{s_vm}, s{s_vm}, s{s_tmp}"]
def adv_krd(par):
    r = [f"s_add_u32 s{s_krd}, s{s_krd}, {TILE}", f"s_cmp_ge_u32 s{s_krd}, {KBASE+NK*TILE}",
         f"s_cselect_b32 s{s_krd}, {KBASE}, s{s_krd}"]
    r += [f"v_add_u32 v{v_ka[par]+i}, s{s_krd}, v{v_kb+i}" for i in range(4)]
    return r
def adv_vrd(par):
    r = [f"s_add_u32 s{s_vrd}, s{s_vrd}, {TILE}", f"s_cmp_ge_u32 s{s_vrd}, {VBASE+NV*TILE}",
         f"s_cselect_b32 s{s_vrd}, {VBASE}, s{s_vrd}"]
    r += [f"v_add_u32 v{v_ka[par]+4+i}, s{s_vrd}, v{v_vb+i}" for i in range(2)]
    return r

def sm_ops(Sc, Pc):
    ops = []; pend = None; first = [True, True]
    idx = 0
    for qt in range(2):
        for pr in range(8):
            ta = TMP + 2 * (idx % 4); tb = ta + 1; idx += 1
            r = Sc + 16 * qt + 2 * pr
            ops.append((2, f"v_exp_f32 v{ta}, v{r}")); ops.append((2, f"v_exp_f32 v{tb}, v{r+1}"))
            if pend: ops += pend
            if first[qt]:
                pend = [(1, f"v_add_f32 v{v_p+qt}, v{ta}, v{tb}")]; first[qt] = False
            else:
                pend = [(1, f"v_add_f32 v{v_p+qt}, v{v_p+qt}, v{ta}"), (1, f"v_add_f32 v{v_p+qt}, v{v_p+qt}, v{tb}")]
            pend.append((1, f"v_cvt_pk_bf16_f32 v{Pc+8*qt+pr}, v{ta}, v{tb}"))
    ops.append((1, "s_nop 0")); ops += pend
    return ops

def halfmax(src16, dst, tmp):
    e(f"v_max3_f32 v{dst}, v{src16}, v{src16+1}, v{src16+2}")
    for i in range(3, 15, 2): e(f"v_max3_f32 v{dst}, v{dst}, v{src16+i}, v{src16+i+1}")
    e(f"v_max_f32 v{dst}, v{dst}, v{src16+15}")
    e(f"v_mov_b32 v{tmp}, v{dst}"); e("s_nop 1")
    e(f"v_permlane32_swap_b32 v{dst}, v{tmp}"); e("s_nop 1")
    e(f"v_max_f32 v{dst}, v{dst}, v{tmp}")

PD = 3
VMW0 = [0]
def iteration(par, do_qk, do_sm, do_pv, nxt, first_c_negm=True, chk=None, dma=True, vm_wait=18, lg=None, extra=None, dtm=False, nxt_dtm=False):
    Sc, Sn, Pc, Pp = S[par], S[1-par], P[par], P[1-par]
    def pairs(dq, dp, dm=False):
        ks = [("K", t) for t in range(12)] if dq else []
        vs = [("V", (s, dt)) for s in range(2) for dt in range(6)] if dp else []
        if dm: vs = [("V", (s, dt)) for dt in range(6) for s in range(2)]
        if dq and dp:
            o = [ks[0]]
            for i in range(1, 12): o += [ks[i], vs[i-1]]
            o += [vs[11]]
            return o
        return ks + vs
    pl = pairs(do_qk, do_pv, dtm)
    npl = pairs(*nxt, nxt_dtm)
    n = len(pl)
    def rd(item, fr, pr_):
        return kread(fr, item[1], pr_) if item[0] == "K" else vread(fr, item[1][1], item[1][0], pr_)
    q = sm_ops(Sc, Pc) if do_sm else []
    tot = sum(c for c, _ in q)
    nslots = 2 * n
    misc = {}
    def put(slot, grp): misc.setdefault(slot, []).append(grp)
    bslot = 3
    if vm_wait is not None: put(bslot, [f"s_waitcnt vmcnt({vm_wait})", "s_barrier"])
    if dma:
        d = dma_k() + [adv_km()] + dma_v(False) + [adv_vm(TILE)]
        step = max(1, (nslots - bslot - 8) // len(d))
        for i, g in enumerate(d): put(min(bslot + 1 + i * step, nslots - 1), g)
    if isinstance(extra, dict):
        for sl_, g in extra.items(): put(sl_, g)
    elif extra:
        for i, g in enumerate(extra): put(min(bslot + 1 + 2 * i, nslots - 1), g)
    aslot = max(bslot + 1, nslots - 2 * PD - 4)
    if nxt[0]: put(aslot - 2 if aslot - 2 > 0 else 0, adv_krd(1 - par))
    if nxt[1]: put(aslot, adv_vrd(1 - par))
    done = 0; qi = 0
    for p in range(n):
        item = pl[p]; fr = p % NF
        for half in range(2):
            slot = 2 * p + half
            if half == 0: lg.wait((par, p))
            qt = half
            if item[0] == "K":
                t = item[1]
                c = (vr(NEGM + 16 * qt, 16) if first_c_negm else "0") if t == 0 else vr(Sn + 16 * qt, 16)
                e(f"v_mfma_f32_32x32x16_bf16 {vr(Sn+16*qt,16)}, {vr(FR+4*fr,4)}, {qfrag(t,qt)}, {c}")
            else:
                s, dt = item[1]
                o = ar(oacc(dt, qt), 16)
                e(f"v_mfma_f32_32x32x16_bf16 {o}, {vr(FR+4*fr,4)}, {vr(Pp+8*qt+4*s,4)}, {o}")
            if half == 0:
                pp = p + PD
                if pp < n: rr, tg = rd(pl[pp], pp % NF, par), (par, pp)
                elif pp - n < len(npl) and npl: rr, tg = rd(npl[pp - n], (pp - n) % NF, 1 - par), (1 - par, pp - n)
                else: rr = []
                for r in rr: e(r); lg.issue(tg)
            for g in misc.get(slot, []):
                for r in g: e(r)
            lim = tot * (slot + 1) / max(1, nslots - 3)
            while qi < len(q) and done < lim:
                e(q[qi][1]); done += q[qi][0]; qi += 1
    while qi < len(q): e(q[qi][1]); qi += 1
    assert n % NF == 0
    if do_sm:
        if chk:
            e(f"v_max_f32 v{v_t}, v{v_p}, v{v_p+1}")
            e(f"v_cmp_lt_f32 vcc, s{s_thr}, v{v_t}")
            e(f"s_cbranch_vccnz {chk}")
            lab(chk + "_ret")
        e(f"v_add_f32 v{v_l}, v{v_l}, v{v_p}"); e(f"v_add_f32 v{v_l+1}, v{v_l+1}, v{v_p+1}")

def rare(name, par, has_next):
    Sc, Sn, Pc = S[par], S[1-par], P[par]
    lab(name)
    e("s_nop 15"); e("s_nop 15")
    for qt in range(2):
        d = v_t + 1; tmp = v_t + 2; al = v_t + 3
        halfmax(Sc + 16 * qt, d, tmp)
        e(f"v_max_f32 v{d}, 0, v{d}")
        e(f"v_sub_f32 v{al}, 0, v{d}"); e(f"v_exp_f32 v{al}, v{al}"); e("s_nop 1")
        for i in range(16):
            e(f"v_sub_f32 v{Sc+16*qt+i}, v{Sc+16*qt+i}, v{d}")
            if has_next: e(f"v_sub_f32 v{Sn+16*qt+i}, v{Sn+16*qt+i}, v{d}")
            e(f"v_sub_f32 v{NEGM+16*qt+i}, v{NEGM+16*qt+i}, v{d}")
        e(f"v_mul_f32 v{v_l+qt}, v{v_l+qt}, v{al}")
        for dt in range(6):
            for i in range(16):
                a = oacc(dt, qt) + i
                e(f"v_accvgpr_read_b32 v{tmp}, a{a}"); e(f"v_mul_f32 v{tmp}, v{tmp}, v{al}"); e(f"v_accvgpr_write_b32 a{a}, v{tmp}")
    for _, t in sm_ops(Sc, Pc): e(t)
    e("s_nop 7")
    e(f"s_branch {name}_ret")

def kernel_a():
    K = "attn_kernel"
    L.append(f".globl {K}\n.p2align 8\n.type {K},@function"); lab(K)
    e("s_cmp_ge_u32 s2, 256"); e("s_cbranch_scc1 A_END")
    e("s_load_dwordx8 s[48:55], s[0:1], 0")
    e("s_load_dwordx2 s[56:57], s[0:1], 56")
    e("s_load_dwordx2 s[96:97], s[0:1], 32")
    e(f"v_lshrrev_b32 v1, 6, v0"); e(f"v_and_b32 v{v_lane}, 63, v0"); e("s_nop 0")
    e(f"v_readfirstlane_b32 s{s_wave}, v1")
    e(f"s_lshr_b32 s{s_b}, s2, 5"); e(f"s_and_b32 s{s_h}, s2, 31")
    stamp()
    if STAMP: e("s_memrealtime s[88:89]")
    e(f"s_mul_i32 s{s_w3}, s{s_wave}, 3072")
    T0, T1, T2, T3 = 228, 229, 230, 231
    e(f"s_mov_b32 s{s_tmp2}, 0xaaab")
    for i in range(3):
        e(f"s_mul_i32 s{s_tmp}, s{s_wave}, 192"); e(f"s_add_u32 s{s_tmp}, s{s_tmp}, {64*i}")
        e(f"v_add_u32 v{T0}, s{s_tmp}, v{v_lane}")
        e(f"v_mul_lo_u32 v{T1}, v{T0}, s{s_tmp2}"); e(f"v_lshrrev_b32 v{T1}, 20, v{T1}")
        e(f"v_mul_u32_u24 v{T2}, 24, v{T1}"); e(f"v_sub_u32 v{T2}, v{T0}, v{T2}")
        e(f"v_bfe_u32 v{T3}, v{T1}, 1, 3"); e(f"v_xor_b32 v{T3}, v{T2}, v{T3}"); e(f"v_lshlrev_b32 v{T3}, 4, v{T3}")
        if "noswzk" in X: e(f"v_lshlrev_b32 v{T3}, 4, v{T2}")
        e(f"v_mul_u32_u24 v{v_kd+i}, 384, v{T1}"); e(f"v_add_u32 v{v_kd+i}, v{v_kd+i}, v{T3}")
        e(f"v_bfe_u32 v{T3}, v{T1}, 1, 1"); e(f"v_lshlrev_b32 v{T3}, 2, v{T3}"); e(f"v_xor_b32 v{T3}, v{T2}, v{T3}"); e(f"v_lshlrev_b32 v{T3}, 4, v{T3}")
        if "noswzv" in X: e(f"v_lshlrev_b32 v{T3}, 4, v{T2}")
        e(f"v_mul_u32_u24 v{v_vd+i}, 384, v{T1}"); e(f"v_add_u32 v{v_vd+i}, v{v_vd+i}, v{T3}")
        e(f"v_mul_u32_u24 v{v_wd+i}, 12288, v{T1}"); e(f"v_add_u32 v{v_wd+i}, v{v_wd+i}, v{T3}")
        if i:
            for b in (v_kd, v_vd, v_wd): e(f"v_subrev_u32 v{b+i}, {1024*i}, v{b+i}")
    e(f"v_and_b32 v{T0}, 31, v{v_lane}")
    e(f"v_and_b32 v{T1}, 19, v{T0}")
    e(f"v_bfe_u32 v{T2}, v{T0}, 2, 1"); e(f"v_lshlrev_b32 v{T2}, 3, v{T2}"); e(f"v_or_b32 v{T1}, v{T1}, v{T2}")
    e(f"v_bfe_u32 v{T2}, v{T0}, 3, 1"); e(f"v_lshlrev_b32 v{T2}, 2, v{T2}"); e(f"v_or_b32 v{T1}, v{T1}, v{T2}")
    e(f"v_bfe_u32 v{T2}, v{T1}, 1, 3")
    e(f"v_lshrrev_b32 v{T3}, 5, v{v_lane}")
    e(f"v_xor_b32 v{T2}, v{T2}, v{T3}")
    e(f"v_mul_u32_u24 v{T1}, 384, v{T1}")
    for tt in range(4):
        e(f"v_xor_b32 v{T0}, {2*tt}, v{T2}"); e(f"v_lshlrev_b32 v{T0}, 4, v{T0}"); e(f"v_add_u32 v{v_kb+tt}, v{T1}, v{T0}")
    e(f"v_bfe_u32 v{T0}, v{v_lane}, 2, 2")
    e(f"v_lshl_add_u32 v{T1}, v{T3}, 3, v{T0}")
    e(f"v_mul_u32_u24 v{T1}, 384, v{T1}")
    e(f"v_bfe_u32 v{T2}, v{v_lane}, 4, 1"); e(f"v_lshl_add_u32 v{T1}, v{T2}, 5, v{T1}")
    e(f"v_and_b32 v{T2}, 1, v{v_lane}"); e(f"v_lshl_add_u32 v{T1}, v{T2}, 4, v{T1}")
    e(f"v_bfe_u32 v{T2}, v{v_lane}, 1, 1"); e(f"v_lshl_add_u32 v{T1}, v{T2}, 3, v{T1}")
    e(f"v_bfe_u32 v{T2}, v{v_lane}, 3, 1")
    e(f"v_lshl_add_u32 v{v_vb}, v{T2}, 6, v{T1}")
    e(f"v_xor_b32 v{T2}, 1, v{T2}"); e(f"v_lshl_add_u32 v{v_vb+1}, v{T2}, 6, v{T1}")
    e(f"v_lshrrev_b32 v{T0}, 3, v{v_lane}"); e(f"s_lshl_b32 s{s_tmp}, s{s_wave}, 6"); e(f"v_add_u32 v{T0}, s{s_tmp}, v{T0}")
    e(f"v_mul_u32_u24 v{T0}, 1280, v{T0}")
    e(f"v_lshrrev_b32 v{T1}, 4, v{v_lane}"); e(f"v_and_b32 v{T2}, 7, v{v_lane}")
    if "noswzx" not in X: e(f"v_xor_b32 v{T2}, v{T2}, v{T1}")
    e(f"v_lshl_add_u32 v{v_xo}, v{T2}, 4, v{T0}")
    if "noswzx" not in X: e(f"v_xor_b32 v{T2}, 4, v{T2}")
    e(f"v_lshl_add_u32 v{v_xo+1}, v{T2}, 4, v{T0}"); e(f"v_add_u32 v{v_xo+1}, {8*1280-1024}, v{v_xo+1}")
    e(f"s_lshl_b32 s{s_tmp}, s{s_wave}, 13"); e(f"s_add_u32 s{s_xb}, s{s_tmp}, 24576")
    e(f"s_mov_b32 s{s_tmp2}, 57344"); e(f"s_cmp_lt_u32 s{s_wave}, 2"); e(f"s_cselect_b32 s{s_tmp2}, s{s_tmp2}, {147456-16384}"); e(f"s_add_u32 s{s_xb+1}, s{s_tmp}, s{s_tmp2}")
    e(f"v_and_b32 v{T0}, 31, v{v_lane}"); e(f"v_bfe_u32 v{T1}, v{T0}, 1, 3"); e(f"v_xor_b32 v{T1}, v{T1}, v{T3}"); e(f"v_lshlrev_b32 v{T0}, 7, v{T0}")
    for j in range(4):
        e(f"v_xor_b32 v{T2}, {2*j}, v{T1}"); e(f"v_lshl_add_u32 v{T2}, v{T2}, 4, v{T0}")
        e(f"v_add_u32 v{TMP+j}, s{s_xb}, v{T2}"); e(f"v_add_u32 v{TMP+4+j}, s{s_xb+1}, v{T2}")
    e(f"s_mov_b32 s{s_kd}, 0"); e(f"s_mov_b32 s{s_vd}, 0")
    e(f"s_add_u32 s{s_km}, s{s_w3}, {KBASE}"); e(f"s_add_u32 s{s_vm}, s{s_w3}, {VBASE}")
    e(f"s_add_u32 s{s_kend}, s{s_km}, {NK*TILE}"); e(f"s_add_u32 s{s_vend}, s{s_vm}, {NV*TILE}")
    e("s_waitcnt lgkmcnt(0)")
    if "qsame" in X: e(f"s_mov_b32 s{s_b}, 0"); e(f"s_mov_b32 s{s_h}, 0")
    e(f"s_mul_i32 s{s_tmp}, s{s_b}, 327680"); e(f"s_add_u32 s48, s48, s{s_tmp}"); e("s_addc_u32 s49, s49, 0")
    e(f"s_mul_i32 s{s_tmp}, s2, 393216")
    e(f"s_add_u32 s50, s50, s{s_tmp}"); e("s_addc_u32 s51, s51, 0"); e(f"s_add_u32 s52, s52, s{s_tmp}"); e("s_addc_u32 s53, s53, 0")
    e(f"s_mul_i32 s{s_tmp}, s{s_h}, 384"); e(f"s_add_u32 s54, s54, s{s_tmp}"); e("s_addc_u32 s55, s55, 0")
    srd(sX, 48, 49, 327680);
    srd(sW, 54, 55, 0); e(f"s_sub_u32 s{sW+2}, 7864320, s{s_tmp}")
    WSTEP = 32 * 12288
    def xdma(n):
        g = []
        for k2 in range(4):
            g.append([f"s_add_u32 m0, s{s_xb+(n%2)}, {2048*k2}", f"s_mov_b32 s{s_xo}, {128*n+20480*k2}",
                      f"buffer_load_dwordx4 v{v_xo}, s[{sX}:{sX+3}], s{s_xo} offen lds",
                      f"buffer_load_dwordx4 v{v_xo+1}, s[{sX}:{sX+3}], s{s_xo} offen offset:1024 lds"])
        return g
    def xread(n):
        return [f"ds_read_b128 {ar(192+32*(n%2)+16*ip+4*(2*s+qt),4)}, v{TMP+4*(n%2)+2*ip+s} offset:{4096*qt}"
                for ip in range(2) for s in range(2) for qt in range(2)]
    vm = []
    def emit_groups(gs):
        for g in gs:
            for r in g: e(r)
    def wtile(isw, st): return dma_v(isw) + [adv_vm(WSTEP if st < 19 else TILE) if st != 19 else adv_vm(0) + [f"s_mov_b32 s{s_vd}, 0"]]
    emit_groups(wtile(True, 0)); vm += [("W", 0)] * 3
    emit_groups(xdma(0)); vm += [("x", 0)] * 8
    emit_groups(wtile(True, 1)); vm += [("W", 1)] * 3
    srd(sK, 50, 51, 393216); srd(sV, 52, 53, 393216)
    srd(sWS, 56, 57, WS_BYTES)
    srd(sWO, 96, 97, 7864320)
    e("s_cmp_ge_u32 s2, 240"); e(f"s_cselect_b32 s{sWO+2}, 0, s{sWO+2}")
    e(f"s_lshl_b32 s{s_tmp}, s2, 2"); e(f"s_add_u32 s{s_tmp}, s{s_tmp}, s{s_wave}")
    e(f"s_mul_hi_u32 s{s_tmp2}, s{s_tmp}, 0x33333334")
    e(f"s_mul_i32 s{s_pk}, s{s_tmp2}, 5"); e(f"s_sub_u32 s{s_tmp}, s{s_tmp}, s{s_pk}")
    e(f"s_mul_i32 s{s_pk}, s{s_tmp2}, 40960"); e(f"s_lshl_b32 s{s_pk+1}, s{s_tmp}, 8"); e(f"s_add_u32 s{s_pk}, s{s_pk}, s{s_pk+1}")
    e(f"s_mul_i32 s{s_pk+1}, s{s_tmp}, {8*192*1024}"); e(f"s_lshl_b32 s{s_tmp2}, s{s_tmp2}, 10")
    e(f"s_add_u32 s{s_pk+1}, s{s_pk+1}, s{s_tmp2}"); e(f"s_add_u32 s{s_pk+1}, s{s_pk+1}, {WS_WO}")
    e(f"s_lshl_b32 s{s_pk+2}, s{s_wave}, 13")
    e(f"s_mov_b32 s{s_c}, {f32(CSCALE)}"); e(f"s_mov_b32 s{s_c+1}, {f32(CSCALE)}"); e(f"s_mov_b32 s{s_thr}, {f32(THR)}")
    for i in range(192): e(f"v_accvgpr_write_b32 a{i}, 0")
    def vmwait(tags):
        last = max(k for k, t in enumerate(vm) if t in tags)
        return min(63, len(vm) - 1 - last)
    lg = LG()
    stamp()
    e(f"s_mov_b32 s{s_vrd}, {VBASE + (NV-1)*TILE}")
    for r in adv_vrd(0): e(r)
    e(f"s_waitcnt vmcnt({vmwait([('W',0),('x',0)])})"); e("s_barrier")
    for r in xread(0): e(r); lg.issue(("x", 0))
    qp = [(s, dt) for s in range(2) for dt in range(6)]
    for p in range(PD):
        for r in vread(p % NF, qp[p][1], qp[p][0], 0): e(r); lg.issue((0, p))
    stamp()
    zero_q = []
    ksched = {12: 0, 13: 1, 16: 2, 17: 3, 18: 4, 19: 5}
    if "nok" in X: ksched = {}
    for i in range(20):
        par = i & 1
        misc = {}
        def put(slot, grp, tags=None): misc.setdefault(slot, []).append((grp, tags))
        st = i + NV - 1
        isw = st < 20
        put(3, "BAR")
        grp = []
        if i in ksched:
            for k, g in enumerate(dma_k() + [adv_km()]): grp.append((g, [("K", ksched[i])] if k < 3 else None))
        xs = {0: [(1, k) for k in range(4)], 1: [(2, k) for k in range(4)]}.get(i, [(i // 2 + 2, 2 * (i % 2) + k) for k in range(2)] if i // 2 + 2 < 10 else [])
        xg = []
        for n2, k2 in xs:
            g = xdma(n2)[k2]
            xg.append((g[:3], [("x", n2)])); xg.append(([g[0], g[1], g[3]], [("x", n2)]))
        wg_ = []
        for st in {0: [2, 3], 1: [4, 5], 2: [6, 7]}.get(i, [i + 5]):
            wt = wtile(st < 20, st)
            for k in range(3): wg_.append(([f"s_mov_b32 m0, s{s_vm}", "s_nop 0", wt[k][-1]] + (wt[3] if k == 2 else []), [("W", st)]))
        if "noilv" in X or i >= 16 or i == 0: grp += (xg + wg_) if i == 0 else (wg_ + xg)
        else:
            a_, b_ = list(wg_), list(xg)
            while a_ or b_:
                if a_: grp.append(a_.pop(0))
                if b_: grp.append(b_.pop(0))
        last = int(OPT.get("qlast", "23"))
        for k, (g, tags) in enumerate(grp): put(4 + (k * (last - 4 + 1)) // len(grp), g, tags)
        if i % 2 == 1 and i < 19: put(12, ("XR", (i + 1) // 2))
        if i < 19: put(14, adv_vrd(1 - par))
        else: put(14, [f"s_mov_b32 s{s_krd}, {KBASE+(NK-1)*TILE}"] + adv_krd(0))
        for p in range(12):
            s, dt = qp[p]; fr = p % NF
            for qt in range(2):
                slot = 2 * p + qt
                if qt == 0:
                    if p == 0 and i % 2 == 0: lg.wait(("x", i // 2))
                    lg.wait((par, p))
                acc = vr(qacc(dt, qt), 16)
                c = "0" if (i == 0 and s == 0) else acc
                e(f"v_mfma_f32_32x32x16_bf16 {acc}, {vr(FR+4*fr,4)}, {ar(192+32*((i//2)%2)+16*(i%2)+4*(2*s+qt),4)}, {c}")
                if qt == 0:
                    pp = p + PD
                    if pp < 12:
                        for r in vread(pp % NF, qp[pp][1], qp[pp][0], par): e(r); lg.issue((par, pp))
                    elif i < 19:
                        for r in vread((pp - 12) % NF, qp[pp-12][1], qp[pp-12][0], 1 - par): e(r); lg.issue((1 - par, pp - 12))
                    else:
                        for r in kread((pp - 12) % NF, pp - 12, 0): e(r); lg.issue(("q0", pp - 12))
                for g, tags in misc.get(slot, []):
                    if g == "BAR":
                        need = [("W", i + 1)] if i < 19 else [("K", 0), ("K", 1), ("W", 22)]
                        if "nok" in X: need = [("W", 20)]
                        e(f"s_waitcnt vmcnt({vmwait(need)})"); e("s_barrier")
                    elif isinstance(g, tuple):
                        e(f"s_waitcnt vmcnt({vmwait([('x', g[1])])})")
                        for r in xread(g[1]): e(r); lg.issue(("x", g[1]))
                    else:
                        for r in g: e(r)
                        if tags: vm += tags
                if zero_q: e(zero_q.pop())
    while zero_q: e(zero_q.pop())
    stamp()
    e("s_nop 15")
    for dt in (4, 5, 0, 1, 2, 3):
        for qt in range(2):
            for a in range(2):
                t = 2 * dt + a; src = qacc(dt, qt) + 8 * a
                for j in range(4): e(f"v_pk_mul_f32 {vr(src+2*j,2)}, {vr(src+2*j,2)}, s[{s_c}:{s_c+1}]")
                if t < 4:
                    d = QV + 4 * (2 * t + qt)
                    for j in range(4): e(f"v_cvt_pk_bf16_f32 v{d+j}, v{src+2*j}, v{src+2*j+1}")
                else:
                    d = (224 + 4 * (2 * (t - 4) + qt)) if t < 8 else (192 + 4 * (2 * (t - 8) + qt))
                    for j in range(4): e(f"v_cvt_pk_bf16_f32 v{TMP+j}, v{src+2*j}, v{src+2*j+1}")
                    for j in range(4): e(f"v_accvgpr_write_b32 a{d+j}, v{TMP+j}")
    e("s_nop 1")
    stamp()
    for p in range(12):
        fr = p % NF
        lg.wait(("q0", p))
        for qt in range(2):
            c = "0" if p == 0 else vr(S[0] + 16 * qt, 16)
            e(f"v_mfma_f32_32x32x16_bf16 {vr(S[0]+16*qt,16)}, {vr(FR+4*fr,4)}, {qfrag(p,qt)}, {c}")
            if qt == 0 and p + PD < 12:
                for r in kread((p + PD) % NF, p + PD, 0): e(r); lg.issue(("q0", p + PD))
    for r in adv_krd(0): e(r)
    for p in range(PD):
        for r in kread(p % NF, p, 0): e(r); lg.issue((0, p))
    e("s_nop 15")
    for qt in range(2):
        d = v_t + 1; tmp = v_t + 2
        halfmax(S[0] + 16 * qt, d, tmp)
        for i in range(16):
            e(f"v_sub_f32 v{S[0]+16*qt+i}, v{S[0]+16*qt+i}, v{d}")
            e(f"v_sub_f32 v{NEGM+16*qt+i}, 0, v{d}")
        e(f"v_mov_b32 v{v_l+qt}, 0")
    e("s_nop 7")
    e(f"s_mov_b32 s{s_vrd}, {VBASE + ((20 - 1) % NV) * TILE}")
    VMW0[0] = vmwait([('K', 2), ('W', 20)]) if "nok" not in X else 0
    return lg


def kernel_a_tail(lg):
    iteration(0, True, True, False, (True, True), chk=None, dma=False, vm_wait=6, lg=lg) if False else None
    global dma_v, adv_vm
    sv, sa = dma_v, adv_vm
    dma_v = lambda isw: []; adv_vm = lambda step: []
    if PKL:
        e(f"v_lshrrev_b32 v{v_pk}, 3, v{v_lane}"); e(f"v_mul_u32_u24 v{v_pk}, 1280, v{v_pk}")
        e(f"v_and_b32 v{v_pk+1}, 7, v{v_lane}"); e(f"v_lshl_add_u32 v{v_pk}, v{v_pk+1}, 4, v{v_pk}")
        e(f"s_lshl_b32 s{s_pk+2}, s{s_wave}, 12"); e(f"s_add_u32 s{s_pk+2}, s{s_pk+2}, 147456")
        e(f"v_lshrrev_b32 v{v_pk+1}, 4, v{v_lane}"); e(f"v_lshlrev_b32 v{v_pk+1}, 10, v{v_pk+1}")
        e(f"v_bfe_u32 v{v_pk+2}, v{v_lane}, 2, 2"); e(f"v_lshl_add_u32 v{v_pk+1}, v{v_pk+2}, 7, v{v_pk+1}")
        e(f"v_and_b32 v{v_pk+2}, 3, v{v_lane}"); e(f"v_lshl_add_u32 v{v_pk+1}, v{v_pk+2}, 3, v{v_pk+1}")
        e(f"v_add_u32 v{v_pk+1}, s{s_pk+2}, v{v_pk+1}"); e(f"v_lshlrev_b32 v{v_pk+2}, 4, v{v_lane}")
    def pkdma(r): return [[f"s_add_u32 m0, s{s_pk+2}, {1024*j}", f"s_add_u32 s{s_xo}, s{s_pk}, {128*r+10240*j}",
                           f"buffer_load_dwordx4 v{v_pk}, s[{sWO}:{sWO+3}], s{s_xo} offen nt lds"] for j in range(4)]
    iteration(0, True, True, False, (True, True), chk=None, vm_wait=VMW0[0], lg=lg, extra={10 + 3 * j: g for j, g in enumerate(pkdma(0))} if (PKL and not PK3) else None)
    dma_v, adv_vm = sv, sa
    e("s_nop 7")
    stamp()
    e(f"s_mov_b32 s{s_cnt}, 15")
    lab("A_LOOP")
    iteration(1, True, True, True, (True, True), chk="RARE1", lg=lg)
    iteration(0, True, True, True, (True, True), chk="RARE0", lg=lg)
    if PKL:
        for r in ((0, 1, 2) if PK3 else (1,)):
            e(f"s_cmp_eq_u32 s{s_cnt}, {13-4*r}"); e(f"s_cbranch_scc1 PK{r}"); lab(f"PK{r}_ret")
    e(f"s_sub_u32 s{s_cnt}, s{s_cnt}, 1"); e(f"s_cmp_lg_u32 s{s_cnt}, 0"); e("s_cbranch_scc1 A_LOOP")
    stamp()
    e("s_waitcnt lgkmcnt(0)")
    vs = [(s, dt) for s in range(2) for dt in range(6)]
    for p in range(PD):
        for r in vread(p % NF, vs[p][1], vs[p][0], 1): e(r); lg.issue((1, p))
    if not PKL:
        e(f"v_lshrrev_b32 v{v_pk}, 4, v{v_lane}"); e(f"v_mul_u32_u24 v{v_pk}, 1280, v{v_pk}")
        e(f"v_and_b32 v{v_pk+1}, 15, v{v_lane}"); e(f"v_lshl_add_u32 v{v_pk}, v{v_pk+1}, 4, v{v_pk}")
        e(f"v_lshrrev_b32 v{v_pk+1}, 4, v{v_lane}"); e(f"v_lshlrev_b32 v{v_pk+1}, 11, v{v_pk+1}")
        e(f"v_bfe_u32 v{v_pk+2}, v{v_lane}, 2, 2"); e(f"v_lshl_add_u32 v{v_pk+1}, v{v_pk+2}, 8, v{v_pk+1}")
        e(f"v_and_b32 v{v_pk+2}, 3, v{v_lane}"); e(f"v_lshl_add_u32 v{v_pk+1}, v{v_pk+2}, 3, v{v_pk+1}")
        e(f"v_add_u32 v{v_pk+1}, s{s_pk+2}, v{v_pk+1}"); e(f"v_lshlrev_b32 v{v_pk+2}, 4, v{v_lane}")
    pk2 = {4: [f"ds_read_b64_tr_b16 {vr(64+4*f+2*h,2)}, v{v_pk+1} offset:{32*f+512*h}" for f in range(2) for h in range(2)],
           5: [f"ds_read_b64_tr_b16 {vr(64+4*f+2*h,2)}, v{v_pk+1} offset:{32*f+512*h}" for f in range(2, 4) for h in range(2)]}
    for f in range(4):
        pk2[12 + 2 * f] = [f"buffer_store_dwordx4 {vr(64+4*f,4)}, v{v_pk+2}, s[{sPW}:{sPW+3}], s{s_pk+1} offen{OST}", f"s_add_u32 s{s_pk+1}, s{s_pk+1}, {192*1024}"]
    if PKL:
        for i in range(4): e(f"s_mov_b32 s{sPW+i}, s{sWS+i}")
        e("s_cmp_ge_u32 s2, 240"); e(f"s_cselect_b32 s{sPW+2}, 0, s{sPW+2}")
    pk = [[f"s_add_u32 m0, s{s_pk+2}, {1024*j}", f"s_add_u32 s{s_xo}, s{s_pk}, {5120*j}",
           f"buffer_load_dwordx4 v{v_pk}, s[{sWO}:{sWO+3}], s{s_xo} offen nt lds"] for j in range(8)]
    iteration(1, False, True, True, (False, True), chk="RARE2", dma=False, vm_wait=0, lg=lg, extra=(None if PK3 else pk2) if PKL else pk, nxt_dtm=IEP)
    T0, T1, T2, T3 = 232, 233, 234, 235
    def lfin(qt): return [f"v_mov_b32 v{v_t+qt}, v{v_l+qt}", "s_nop 1", f"v_permlane32_swap_b32 v{v_l+qt}, v{v_t+qt}", "s_nop 1",
                          f"v_add_f32 v{v_l+qt}, v{v_l+qt}, v{v_t+qt}", f"v_rcp_f32 v{v_l+qt}, v{v_l+qt}"]
    of1 = [f"v_lshrrev_b32 v{T3}, 5, v{v_lane}",
           f"v_bfe_u32 v{T0}, v{v_lane}, 4, 1", f"s_lshl_b32 s{s_tmp}, s{s_wave}, 2", f"v_add_u32 v{T0}, s{s_tmp}, v{T0}",
           f"s_mov_b32 s{s_tmp2}, 196608", f"v_mul_lo_u32 v{T0}, v{T0}, s{s_tmp2}"]
    of2 = [f"v_lshl_add_u32 v{T0}, v{T3}, 8, v{T0}", f"v_and_b32 v{T1}, 15, v{v_lane}", f"v_lshl_add_u32 v{v_oo}, v{T1}, 4, v{T0}",
           f"v_add_u32 v{v_oo+1}, {2*196608}, v{v_oo}",
           f"s_mul_i32 s{s_tmp}, s{s_b}, {16*196608}", f"s_mul_i32 s{s_tmp2}, s{s_h}, 6144", f"s_add_u32 s{s_tmp}, s{s_tmp}, s{s_tmp2}",
           f"s_add_u32 s{s_tmp2}, s{s_tmp}, 4096"]
    TB = [64, 76, 88, 100, 112, 160, 172, 184, 196, 208]
    kk = [0]
    def egrp(dt, qt, a):
        b = TB[kk[0] % len(TB)]; kk[0] += 1
        src = oacc(dt, qt) + 8 * a
        g = [f"v_accvgpr_read_b32 v{b+j}, a{src+j}" for j in range(8)]
        g += [f"v_pk_mul_f32 {vr(b+2*j,2)}, {vr(b+2*j,2)}, {vr(v_l,2)} op_sel:[0,{qt}] op_sel_hi:[1,{qt}]" for j in range(4)]
        g += [f"v_cvt_pk_bf16_f32 v{b+8+j}, v{b+2*j}, v{b+2*j+1}" for j in range(4)]
        off = dt * 1024 + a * 512
        so = s_tmp if off < 4096 else s_tmp2
        g.append(f"buffer_store_dwordx4 {vr(b+8,4)}, v{v_oo+qt}, s[{sWS}:{sWS+3}], s{so} offen offset:{off%4096}{OST}")
        return g
    if IEP:
        ex = {0: lfin(0), 1: lfin(1), 2: of1, 3: of2}
        for dt in range(5):
            for qt in range(2):
                for a in range(2): ex[4 * dt + 4 + 2 * qt + a] = egrp(dt, qt, a)
        iteration(0, False, False, True, (False, False), dma=False, vm_wait=None, lg=lg, extra=ex, dtm=True)
        stamp()
        e("s_nop 15"); e("s_nop 7")
        for qt in range(2):
            for a in range(2):
                for r in egrp(5, qt, a): e(r)
    else:
        iteration(0, False, False, True, (False, False), dma=False, vm_wait=None, lg=lg)
        stamp()
        e("s_nop 15")
        for r in lfin(0) + lfin(1) + of1 + of2: e(r)
        for dt in range(6):
            for qt in range(2):
                for a in range(2):
                    for r in egrp(dt, qt, a): e(r)
    if not PKL:
        e("s_cmp_ge_u32 s2, 240"); e("s_cbranch_scc1 A_NOPK")
        e("s_waitcnt vmcnt(24)")
        for f in range(8):
            e(f"ds_read_b64_tr_b16 {vr(160+4*f,2)}, v{v_pk+1} offset:{32*f}"); e(f"ds_read_b64_tr_b16 {vr(162+4*f,2)}, v{v_pk+1} offset:{32*f+1024}")
        for f in range(8):
            e(f"s_waitcnt lgkmcnt({14-2*f})")
            e(f"buffer_store_dwordx4 {vr(160+4*f,4)}, v{v_pk+2}, s[{sWS}:{sWS+3}], s{s_pk+1} offen{OST}")
            if f < 7: e(f"s_add_u32 s{s_pk+1}, s{s_pk+1}, {192*1024}")
        lab("A_NOPK")
    e("s_waitcnt vmcnt(0)") if STAMP else None
    stamp()
    stamp_flush()
    lab("A_END")
    e("s_endpgm")
    if PKL:
        FT = [TMP, TMP + 4, 232, 236]
        for r in ((0, 1, 2) if PK3 else (1,)):
            lab(f"PK{r}")
            e("s_cmp_ge_u32 s2, 240"); e(f"s_cbranch_scc1 PK{r}_ret")
            if r > 0:
                for f in range(4):
                    e(f"ds_read_b64_tr_b16 {vr(FT[f],2)}, v{v_pk+1} offset:{32*f}"); e(f"ds_read_b64_tr_b16 {vr(FT[f]+2,2)}, v{v_pk+1} offset:{32*f+512}")
                for f in range(4):
                    e(f"s_waitcnt lgkmcnt({6-2*f})")
                    e(f"buffer_store_dwordx4 {vr(FT[f],4)}, v{v_pk+2}, s[{sWS}:{sWS+3}], s{s_pk+1} offen{OST}")
                    e(f"s_add_u32 s{s_pk+1}, s{s_pk+1}, {192*1024}")
            if r < 2:
                for j in range(4):
                    e(f"s_add_u32 m0, s{s_pk+2}, {1024*j}"); e(f"s_add_u32 s{s_xo}, s{s_pk}, {128*r+10240*j}")
                    e(f"buffer_load_dwordx4 v{v_pk}, s[{sWO}:{sWO+3}], s{s_xo} offen nt lds")
            if r > 0: e("s_nop 4")
            e(f"s_branch PK{r}_ret")
    rare("RARE1", 1, True); rare("RARE0", 0, True); rare("RARE2", 1, False)

def kernel_pack():
    K = "pack_kernel"
    L.append(f".globl {K}\n.p2align 8\n.type {K},@function"); lab(K)
    e("s_cmp_ge_u32 s2, 240"); e("s_cbranch_scc1 P_END")
    e("s_load_dwordx2 s[4:5], s[0:1], 32"); e("s_load_dwordx2 s[6:7], s[0:1], 56")
    e("v_lshrrev_b32 v1, 6, v0"); e("v_and_b32 v0, 63, v0"); e("s_nop 0"); e("v_readfirstlane_b32 s3, v1")
    e("s_waitcnt lgkmcnt(0)")
    srd(8, 4, 5, 7864320); srd(12, 6, 7, WS_BYTES)
    e("s_lshl_b32 s16, s2, 2"); e("s_add_u32 s16, s16, s3")
    e("s_mul_hi_u32 s17, s16, 0x33333334")
    e("s_mul_i32 s18, s17, 5"); e("s_sub_u32 s18, s16, s18")
    e("v_lshrrev_b32 v1, 4, v0"); e("v_mul_u32_u24 v1, 10240, v1"); e("v_and_b32 v2, 15, v0"); e("v_lshl_add_u32 v1, v2, 1, v1")
    e("s_mul_i32 s19, s17, 40960"); e("s_lshl_b32 s20, s18, 8"); e("s_add_u32 s19, s19, s20")
    for j in range(8): e(f"v_add_u32 v{2+j}, {1280*j}, v1")
    for i in range(8):
        for j in range(8):
            e(f"buffer_load_ushort v{64+8*i+j}, v{2+j}, s[8:11], s19 offen offset:{32*i}")
        if i == 6: e("s_waitcnt vmcnt(40)")
    e("v_lshlrev_b32 v1, 4, v0")
    e("s_mul_i32 s20, s18, %d" % (8 * 192 * 1024)); e("s_lshl_b32 s21, s17, 10"); e("s_add_u32 s20, s20, s21"); e(f"s_add_u32 s20, s20, {WS_WO}")
    e("s_waitcnt vmcnt(0)")
    for i in range(8):
        for j in range(4): e(f"v_lshl_or_b32 v{16+4*i+j}, v{64+8*i+2*j+1}, 16, v{64+8*i+2*j}")
    for i in range(8):
        e(f"buffer_store_dwordx4 {vr(16+4*i,4)}, v1, s[12:15], s20 offen")
        e(f"s_add_u32 s20, s20, {192*1024}")
    lab("P_END"); e("s_endpgm")

def kernel_b():
    K = "oproj_kernel"
    L.append(f".globl {K}\n.p2align 8\n.type {K},@function"); lab(K)
    OT = OPT.get("otest") == "1"; KS = 24 if OT else 48
    e(f"s_cmp_ge_u32 s2, {512 if OT else 256}"); e("s_cbranch_scc1 B_END")
    if OT: e("s_lshr_b32 s30, s2, 8"); e("s_and_b32 s2, s2, 255"); e("s_mul_i32 s30, s30, 24576")
    e("s_load_dwordx2 s[4:5], s[0:1], 40"); e("s_load_dwordx2 s[6:7], s[0:1], 56")
    e("v_lshrrev_b32 v1, 6, v0"); e("v_and_b32 v0, 63, v0"); e("s_nop 0"); e("v_readfirstlane_b32 s3, v1")
    e("s_waitcnt lgkmcnt(0)")
    if STAMP: e("s_memrealtime s[40:41]"); e("s_memtime s[44:45]")
    srd(8, 4, 5, 2621440); srd(12, 6, 7, WS_BYTES)
    e("s_and_b32 s16, s2, 7"); e("s_lshr_b32 s17, s2, 3"); e("s_and_b32 s18, s17, 3"); e("s_lshl_b32 s16, s16, 2"); e("s_add_u32 s16, s16, s18")
    e("s_lshr_b32 s17, s17, 2")
    if OPT.get("omap") == "1":
        e("s_and_b32 s16, s2, 7"); e("s_lshr_b32 s17, s2, 3")
        e("s_lshr_b32 s18, s16, 1"); e("s_lshl_b32 s18, s18, 3"); e("s_and_b32 s19, s17, 7"); e("s_add_u32 s18, s18, s19")
        e("s_and_b32 s16, s16, 1"); e("s_lshl_b32 s16, s16, 2"); e("s_lshr_b32 s17, s17, 3"); e("s_add_u32 s17, s17, s16")
        e("s_mov_b32 s16, s18")
    if OPT.get("omap") == "2":
        e("s_lshr_b32 s16, s2, 3"); e("s_and_b32 s17, s2, 7")
    e("s_mul_i32 s20, s16, %d" % (4 * 196608)); e("s_mul_i32 s22, s3, %d" % (48 * 1024)); e("s_add_u32 s20, s20, s22")
    if OT: e("s_add_u32 s22, s22, s30"); e("s_add_u32 s20, s20, s30")
    e("s_mul_i32 s21, s17, %d" % (5 * 196608)); e("s_add_u32 s21, s21, s22"); e(f"s_add_u32 s21, s21, {WS_WO}")
    if "osameO" in X: e("s_mov_b32 s20, s22")
    if "osameW" in X: e(f"s_add_u32 s21, s22, {WS_WO}")
    e("v_lshlrev_b32 v1, 4, v0")
    for i in range(1, 5): e(f"v_add_u32 v{1+i}, {196608*i}, v1")
    ACC = 16; FRB = 96; D = int(OPT.get("od", "4")); LA = D - 1
    def slot(k, o, n):
        j = k % D
        return vr(FRB + 36 * j + o, n) if j < 4 else ar(36 * (j - 4) + o, n)
    def loads(k):
        r = [f"buffer_load_dwordx4 {slot(k,4*i,4)}, v{1+i}, s[12:15], s20 offen" for i in range(4)]
        r += [f"buffer_load_dwordx4 {slot(k,16+4*i,4)}, v{1+i}, s[12:15], s21 offen" for i in range(5)]
        if "oldsdma" in X:
            r = [f"buffer_load_dwordx4 v{1+i}, s[12:15], s20 offen offset:{0} lds" for i in range(4)]
            r += [f"buffer_load_dwordx4 v{1+i}, s[12:15], s21 offen offset:{0} lds" for i in range(5)]
        r += ["s_add_u32 s20, s20, 1024", "s_add_u32 s21, s21, 1024"]
        return r
    def mf(k, first):
        r = []
        for n in range(5):
            for m in range(4):
                acc = vr(ACC + 4 * (5 * m + n), 4)
                r.append(f"v_mfma_f32_16x16x32_bf16 {acc}, {slot(k,16+4*n,4)}, {slot(k,4*m,4)}, {'0' if first else acc}")
        return r
    if "oldsdma" in X: e("s_lshl_b32 s24, s3, 12"); e("s_mov_b32 m0, s24")
    for k in range(LA):
        for r in loads(k): e(r)
    def group(k0, first, last):
        for k in range(k0, k0 + D):
            have = (not last) or (k + LA < KS)
            nl = loads(k + LA) if have else []
            outst = (LA - 1) if have else (KS - 1 - k)
            e(f"s_waitcnt vmcnt({9 * outst})")
            ms = mf(k, first and k == k0)
            for i, m in enumerate(ms):
                e(m)
                if i % 2 == 1 and nl: e(nl.pop(0))
            while nl: e(nl.pop(0))
    NG = KS // D
    group(0, True, False)
    e(f"s_mov_b32 s23, {NG - 2}")
    lab("B_LOOP")
    group(D, False, False)
    e("s_sub_u32 s23, s23, 1"); e("s_cmp_lg_u32 s23, 0"); e("s_cbranch_scc1 B_LOOP")
    group(KS - D, False, True)
    e("s_nop 15")
    e("s_mul_i32 s24, s3, 20480"); e("v_lshlrev_b32 v6, 4, v0"); e("v_add_u32 v7, s24, v6")
    for t in range(20): e(f"ds_write_b128 v7, {vr(ACC+4*t,4)} offset:{1024*t}")
    e("s_waitcnt lgkmcnt(0)"); e("s_barrier")
    e("s_mul_i32 s24, s3, 5120"); e("v_add_u32 v7, s24, v6"); e("v_add_u32 v8, 40960, v7")
    for n in range(5):
        for w in range(4):
            e(f"ds_read_b128 {vr(FRB+16*n+4*w,4)}, v{7 + (w//2)} offset:{20480*(w%2)+1024*n}")
    e("s_lshl_b32 s24, s16, 6"); e("s_lshl_b32 s25, s3, 4"); e("s_add_u32 s24, s24, s25")
    e("v_and_b32 v9, 15, v0"); e("v_add_u32 v9, s24, v9"); e("v_mul_u32_u24 v9, 1280, v9")
    e("v_lshrrev_b32 v10, 4, v0"); e("v_lshl_add_u32 v9, v10, 3, v9"); e("s_mul_i32 s25, s17, 160")
    for n in range(5):
        e(f"s_waitcnt lgkmcnt({min(15, 4*(4-n))})")
        b = FRB + 16 * n
        for j in range(4):
            e(f"v_add_f32 v{b+j}, v{b+j}, v{b+4+j}"); e(f"v_add_f32 v{b+8+j}, v{b+8+j}, v{b+12+j}")
        for j in range(4): e(f"v_add_f32 v{b+j}, v{b+j}, v{b+8+j}")
        e(f"v_cvt_pk_bf16_f32 v{b+4}, v{b}, v{b+1}"); e(f"v_cvt_pk_bf16_f32 v{b+5}, v{b+2}, v{b+3}")
        e(f"buffer_store_dwordx2 {vr(b+4,2)}, v9, s[8:11], s25 offen offset:{32*n}")
    if STAMP:
        e("s_waitcnt vmcnt(0)"); e("s_memrealtime s[42:43]"); e("s_memtime s[46:47]"); e("s_waitcnt lgkmcnt(0)")
        e("s_cmp_lg_u32 s3, 0"); e("s_cbranch_scc1 B_END")
        e("s_lshl_b32 s24, s2, 4"); e("s_add_u32 s24, s24, 0x4800000"); e("v_mov_b32 v1, s24")
        e("s_sub_u32 s46, s46, s44")
        for i, r in enumerate((40, 42, 46)):
            e(f"v_mov_b32 v2, s{r}"); e(f"buffer_store_dword v2, v1, s[12:15], 0 offen offset:{4*i}")
    lab("B_END"); e("s_endpgm")

WS_PART = 0x2000000
def kernel_b4():
    K = "oproj_kernel"
    L.append(f".globl {K}\n.p2align 8\n.type {K},@function"); lab(K)
    e("s_cmp_ge_u32 s2, 256"); e("s_cbranch_scc1 B_END")
    e("s_load_dwordx2 s[6:7], s[0:1], 56")
    e("v_lshrrev_b32 v1, 6, v0"); e("v_and_b32 v0, 63, v0"); e("s_nop 0"); e("v_readfirstlane_b32 s3, v1")
    e("s_and_b32 s16, s2, 3")
    e("s_bfe_u32 s17, s2, 0x10002"); e("s_lshl_b32 s17, s17, 3"); e("s_bfe_u32 s18, s2, 0x30003"); e("s_add_u32 s17, s17, s18")
    e("s_lshr_b32 s18, s2, 6")
    e("s_mul_i32 s19, s16, 49152")
    e("s_mul_i32 s20, s17, %d" % (8 * 196608)); e("s_add_u32 s20, s20, s19")
    e("s_mul_i32 s21, s18, %d" % (10 * 196608)); e("s_add_u32 s21, s21, s19"); e(f"s_add_u32 s21, s21, {WS_WO}")
    e("v_lshlrev_b32 v1, 4, v0")
    e("s_mul_i32 s22, s3, %d" % (2 * 196608)); e("v_add_u32 v2, s22, v1"); e(f"v_add_u32 v3, {196608-2048}, v2")
    for c in range(5):
        e("s_mul_i32 s22, s3, 5"); e(f"s_add_u32 s22, s22, {c}")
        e("s_lshr_b32 s23, s22, 1"); e("s_mul_i32 s23, s23, 196608"); e("s_and_b32 s22, s22, 1"); e("s_lshl_b32 s22, s22, 10"); e("s_add_u32 s23, s23, s22")
        if c in (1, 2, 3): e(f"s_sub_u32 s23, s23, {1024*c}")
        e(f"v_add_u32 v{4+c}, s23, v1")
    e("s_lshl_b32 s24, s3, 12"); e("s_mul_i32 s25, s3, 5120"); e("s_add_u32 s25, s25, 16384")
    e("s_and_b32 s22, s3, 1"); e("s_lshl_b32 s22, s22, 13"); e("v_add_u32 v9, s22, v1")
    e("s_lshr_b32 s22, s3, 1"); e("s_mul_i32 s22, s22, 10240"); e("s_add_u32 s22, s22, 16384"); e("v_add_u32 v10, s22, v1")
    e("v_add_u32 v11, 73728, v9"); e("v_add_u32 v12, 73728, v10")
    e("s_waitcnt lgkmcnt(0)")
    if STAMP: e("s_memrealtime s[40:41]"); e("s_memtime s[44:45]")
    srd(12, 6, 7, WS_BYTES)
    SL = 36864; ACC = 16; FA = 96
    def dmas(q):
        b = SL * q
        r = [[f"s_add_u32 m0, s24, {b}", "s_nop 0", "buffer_load_dwordx4 v2, s[12:15], s20 offen lds"],
             ["buffer_load_dwordx4 v2, s[12:15], s20 offen offset:1024 lds"],
             ["buffer_load_dwordx4 v3, s[12:15], s20 offen offset:2048 lds"],
             ["buffer_load_dwordx4 v3, s[12:15], s20 offen offset:3072 lds", "s_add_u32 s20, s20, 2048"],
             [f"s_add_u32 m0, s25, {b}", "s_nop 0", "buffer_load_dwordx4 v4, s[12:15], s21 offen lds"]]
        for c in (1, 2, 3): r.append([f"buffer_load_dwordx4 v{4+c}, s[12:15], s21 offen offset:{1024*c} lds"])
        r.append([f"s_add_u32 m0, s25, {b+4096}", "s_nop 0", "buffer_load_dwordx4 v8, s[12:15], s21 offen lds", "s_add_u32 s21, s21, 2048"])
        return r
    def stage(q, first, vmw, more):
        e(f"s_waitcnt vmcnt({vmw})"); e("s_barrier")
        ra, rb = (9, 10) if q < 2 else (11, 12)
        b = SL * (q % 2)
        for ts in range(2):
            f = FA + 36 * ts
            order = [("W", 0)] + [("O", m) for m in range(4)] + [("W", n) for n in range(1, 5)]
            for kind, i in order:
                if kind == "W": e(f"ds_read_b128 {vr(f+16+4*i,4)}, v{rb} offset:{b+2048*i+1024*ts}")
                else: e(f"ds_read_b128 {vr(f+4*i,4)}, v{ra} offset:{b+2048*i+1024*ts}")
        d = dmas((q + 3) % 4) if more else []
        cnt = 0
        for ts in range(2):
            f = FA + 36 * ts
            for n in range(5):
                for m in range(4):
                    pos = 9 * ts + max(0 if n == 0 else 4 + n, 1 + m)
                    if m == 0 or n == 0: e(f"s_waitcnt lgkmcnt({min(15, 17 - pos)})")
                    acc = vr(ACC + 4 * (5 * m + n), 4)
                    e(f"v_mfma_f32_16x16x32_bf16 {acc}, {vr(f+16+4*n,4)}, {vr(f+4*m,4)}, {'0' if (first and ts == 0) else acc}")
                    cnt += 1
                    if cnt % 4 == 2 and d:
                        for r in d.pop(0): e(r)
        assert not d
    for q in range(3):
        for g in dmas(q):
            for r in g: e(r)
    stage(0, True, 18, True)
    for q in (1, 2, 3): stage(q, False, 18, True)
    e("s_mov_b32 s23, 4")
    lab("B_LOOP")
    for q in range(4): stage(q, False, 18, True)
    e("s_sub_u32 s23, s23, 1"); e("s_cmp_lg_u32 s23, 0"); e("s_cbranch_scc1 B_LOOP")
    stage(0, False, 18, True); stage(1, False, 18, False); stage(2, False, 9, False); stage(3, False, 0, False)
    e("s_lshl_b32 s22, s17, 2"); e("s_add_u32 s22, s22, s18"); e("s_lshl_b32 s22, s22, 2"); e("s_add_u32 s22, s22, s3")
    e("s_lshl_b32 s22, s22, 2"); e("s_add_u32 s22, s22, s16"); e("s_mul_i32 s22, s22, 20480"); e(f"s_add_u32 s22, s22, {WS_PART}")
    e("s_nop 7")
    if "opre" in X: e("s_memtime s[46:47]")
    for t in range(20):
        e(f"buffer_store_dwordx4 {vr(ACC+4*t,4)}, v1, s[12:15], s22 offen offset:{1024*(t%4)}{PST}")
        if t % 4 == 3: e("s_add_u32 s22, s22, 4096")
    if STAMP:
        e("s_waitcnt vmcnt(0)"); e("s_memrealtime s[42:43]")
        if "opre" not in X: e("s_memtime s[46:47]")
        e("s_waitcnt lgkmcnt(0)")
        e("s_cmp_lg_u32 s3, 0"); e("s_cbranch_scc1 B_END")
        e("s_lshl_b32 s24, s2, 4"); e("s_add_u32 s24, s24, 0x4800000"); e("v_mov_b32 v1, s24")
        e("s_sub_u32 s46, s46, s44")
        for i, r in enumerate((40, 42, 46)):
            e(f"v_mov_b32 v2, s{r}"); e(f"buffer_store_dword v2, v1, s[12:15], 0 offen offset:{4*i}")
    lab("B_END"); e("s_endpgm")

def kernel_r():
    K = "reduce_kernel"
    L.append(f".globl {K}\n.p2align 8\n.type {K},@function"); lab(K)
    e("s_cmp_ge_u32 s2, 256"); e("s_cbranch_scc1 R_END")
    e("s_load_dwordx2 s[4:5], s[0:1], 40"); e("s_load_dwordx2 s[6:7], s[0:1], 56")
    e("v_lshrrev_b32 v1, 6, v0"); e("v_and_b32 v0, 63, v0"); e("s_nop 0"); e("v_readfirstlane_b32 s3, v1")
    e("v_lshlrev_b32 v1, 4, v0")
    e("s_mul_i32 s20, s2, 81920"); e("s_mul_i32 s21, s3, 5120"); e("s_add_u32 s20, s20, s21"); e(f"s_add_u32 s20, s20, {WS_PART}")
    e("s_add_u32 s21, s20, 4096")
    e("s_lshr_b32 s16, s2, 4"); e("s_lshl_b32 s16, s16, 7"); e("s_and_b32 s17, s2, 1"); e("s_lshl_b32 s17, s17, 6"); e("s_add_u32 s16, s16, s17")
    e("s_lshl_b32 s17, s3, 4"); e("s_add_u32 s16, s16, s17")
    e("s_bfe_u32 s17, s2, 0x20002"); e("s_mul_i32 s17, s17, 320"); e("s_bfe_u32 s18, s2, 0x10001"); e("s_mul_i32 s18, s18, 160"); e("s_add_u32 s17, s17, s18")
    e("v_and_b32 v9, 15, v0"); e("v_add_u32 v9, s16, v9"); e("v_mul_u32_u24 v9, 1280, v9")
    e("v_lshrrev_b32 v10, 4, v0"); e("v_lshl_add_u32 v9, v10, 3, v9")
    e("s_waitcnt lgkmcnt(0)")
    srd(8, 4, 5, 2621440); srd(12, 6, 7, WS_BYTES)
    for n in range(5):
        for s_ in range(4):
            so = "s20" if n < 4 else "s21"
            e(f"buffer_load_dwordx4 {vr(16+16*n+4*s_,4)}, v1, s[12:15], {so} offen offset:{1024*(n%4)}")
            e("s_add_u32 s20, s20, 20480") if n < 4 else e("s_add_u32 s21, s21, 20480")
        if n < 4: e("s_sub_u32 s20, s20, 81920")
    for n in range(5):
        e(f"s_waitcnt vmcnt({4*(4-n) + n})")
        b = 16 + 16 * n
        for s_ in (1, 2, 3):
            for j in range(4): e(f"v_add_f32 v{b+j}, v{b+j}, v{b+4*s_+j}")
        e(f"v_cvt_pk_bf16_f32 v{b+4}, v{b}, v{b+1}"); e(f"v_cvt_pk_bf16_f32 v{b+5}, v{b+2}, v{b+3}")
        e(f"buffer_store_dwordx2 {vr(b+4,2)}, v9, s[8:11], s17 offen offset:{32*n}")
    if STAMP:
        e("s_waitcnt vmcnt(0)"); e("s_memrealtime s[42:43]"); e("s_waitcnt lgkmcnt(0)")
        e("s_cmp_lg_u32 s3, 0"); e("s_cbranch_scc1 R_END")
        e("s_lshl_b32 s24, s2, 4"); e("s_add_u32 s24, s24, 0x4800000"); e("v_mov_b32 v1, s24")
        e(f"v_mov_b32 v2, s42"); e(f"buffer_store_dword v2, v1, s[12:15], 0 offen offset:12")
    lab("R_END"); e("s_endpgm")

def desc(name, vg, acc, sg=102):
    L.append(f""".p2align 6
.amdhsa_kernel {name}
  .amdhsa_next_free_vgpr {vg}
  .amdhsa_next_free_sgpr {sg}
  .amdhsa_accum_offset {acc}
  .amdhsa_group_segment_fixed_size 0
  .amdhsa_kernarg_size 64
  .amdhsa_user_sgpr_count 2
  .amdhsa_user_sgpr_kernarg_segment_ptr 1
  .amdhsa_system_sgpr_workgroup_id_x 1
.end_amdhsa_kernel""")

hdr = open("standalone__mha_block_cached__near_ridge.s.ref").read().split("\n")
hdr = [h for h in hdr if h.startswith(";") and "@launch" not in h and "Override" not in h and "grid=ceil" not in h]
L += hdr
L.append(f"; @launch kernel=attn_kernel grid=(256,1,1) block=(256,1,1) lds={LDS_A}")
if OS4:
    L.append("; @launch kernel=oproj_kernel grid=(256,1,1) block=(256,1,1) lds=147456")
    L.append("; @launch kernel=reduce_kernel grid=(256,1,1) block=(256,1,1) lds=0")
else:
    L.append("; @launch kernel=oproj_kernel grid=(%d,1,1) block=(256,1,1) lds=81920" % (512 if OPT.get("otest") == "1" else 256))
L.append('.amdgcn_target "amdgcn-amd-amdhsa--gfx950"\n.text')
lg = kernel_a(); kernel_a_tail(lg)
(kernel_b4(), kernel_r()) if OS4 else kernel_b()
L.append('.section .rodata,"a"')
desc("attn_kernel", 512, 256, 102); desc("oproj_kernel", 256, 256, 48)
if OS4: desc("reduce_kernel", 128, 128, 48)
open(OUT, "w").write("\n".join(L) + "\n")
print("wrote", OUT, len(L), "lines")
```
